```python
import torch

def _softmax(x, axis=-1):
    return torch.softmax(x, dim=axis)
def _gelu(x):
    return torch.nn.functional.gelu(x, approximate="tanh")
def _silu(x):
    return torch.nn.functional.silu(x)
def _sigmoid(x):
    return torch.sigmoid(x)
def _layernorm(x, axis=-1, eps=1e-5):
    m = x.mean(dim=axis, keepdim=True)
    v = x.var(dim=axis, keepdim=True, unbiased=False)
    return (x - m) / torch.sqrt(v + eps)
def _scatter_add(tgt, idx, src, axis=0):
    return tgt.clone().index_add_(axis, idx, src)
def _segment_sum(src, seg, n):
    out = torch.zeros((n,) + src.shape[1:], dtype=src.dtype)
    return out.index_add_(0, seg, src)
def _pad(x, pw):
    flat = tuple(v for pair in reversed(pw) for v in pair)
    return torch.nn.functional.pad(x, flat)

kernel_name = 'parallel_sum__grouped_kv_mqa__glu_gated_geglu__prompt'

def setup_inputs():

    _w = (lambda a: (lambda t: t.to(torch.bfloat16) if t.is_floating_point() else t)(torch.as_tensor(a)))
    def _A_setup():
        B, S, D, H = 1, 2048, 512, 32
        Dh = D // H
        return {
            "x": _w((lambda *s: torch.randn(*s, dtype=torch.bfloat16) * 0.05)(B, S, D)),
            "wq": _w((lambda *s: torch.randn(*s, dtype=torch.bfloat16) * 0.05)(D, H * Dh)),
            "wk": _w((lambda *s: torch.randn(*s, dtype=torch.bfloat16) * 0.05)(D, Dh)),
            "wv": _w((lambda *s: torch.randn(*s, dtype=torch.bfloat16) * 0.05)(D, Dh)),
            "wo": _w((lambda *s: torch.randn(*s, dtype=torch.bfloat16) * 0.05)(H * Dh, D)),
        }
    _A_in = _A_setup()

    def _B_setup():
        B, S, Dm, Df = 1, 2048, 512, 1792
        return {
            "x": _w((lambda *s: torch.randn(*s, dtype=torch.bfloat16) * 0.05)(B, S, Dm)),
            "w_gate": _w((lambda *s: torch.randn(*s, dtype=torch.bfloat16) * 0.4)(Dm, Df) * (Dm ** -0.5)),
            "w_up": _w((lambda *s: torch.randn(*s, dtype=torch.bfloat16) * 0.4)(Dm, Df) * (Dm ** -0.5)),
            "w_down": _w((lambda *s: torch.randn(*s, dtype=torch.bfloat16) * 0.4)(Df, Dm) * (Df ** -0.5)),
        }
    _B_in = _B_setup()

    return {
        "A_x": _A_in["x"],
        "A_wq": _A_in["wq"],
        "A_wk": _A_in["wk"],
        "A_wv": _A_in["wv"],
        "A_wo": _A_in["wo"],
        "B_x": _B_in["x"],
        "B_w_gate": _B_in["w_gate"],
        "B_w_up": _B_in["w_up"],
        "B_w_down": _B_in["w_down"],
    }

def reference(A_x, A_wq, A_wk, A_wv, A_wo, B_x, B_w_gate, B_w_up, B_w_down):
    def _A_ref(x, wq, wk, wv, wo):
        B, S, D = x.shape
        H = 32
        Dh = D // H
        q = (lambda x, *d: x.permute(*d))((x @ wq).reshape(B, S, H, Dh), 0, 2, 1, 3)
        k = x @ wk
        v = x @ wv
        scores = torch.einsum("bhqd,bkd->bhqk", q, k) * (Dh ** -0.5)
        p = _softmax(scores, axis=-1)
        o = torch.einsum("bhqk,bkd->bhqd", p, v)
        return (lambda x, *d: x.permute(*d))(o, 0, 2, 1, 3).reshape(B, S, H * Dh) @ wo

    def _B_ref(x, w_gate, w_up, w_down):
        g = torch.einsum("bsd,df->bsf", x, w_gate)
        u = torch.einsum("bsd,df->bsf", x, w_up)
        h = _gelu(g) * u
        return torch.einsum("bsf,fd->bsd", h, w_down)

    x = A_x
    xn = _layernorm(x, axis=-1)
    return x + _A_ref(xn, A_wq, A_wk, A_wv, A_wo) + _B_ref(xn, B_w_gate, B_w_up, B_w_down)
```

```python
import re
def v(i, n=1):
    return f"v{i}" if n == 1 else f"v[{i}:{i+n-1}]"
def a(i, n=1):
    return f"a{i}" if n == 1 else f"a[{i}:{i+n-1}]"
def s(i, n=1):
    return f"s{i}" if n == 1 else f"s[{i}:{i+n-1}]"

class Asm:
    def __init__(self):
        self.lines = []
        self.uid = 0
    def __call__(self, text):
        for ln in text.strip("\n").split("\n"):
            ln = ln.strip()
            if ln:
                self.lines.append("    " + ln)
    def label(self, name):
        self.lines.append(f"{name}:")
    def raw(self, text):
        self.lines.append(text)
    def c(self, text):
        self.lines.append(f"    ; {text}")
    def newlabel(self, prefix="L"):
        self.uid += 1
        return f"{prefix}_{self.uid}"
    def nop(self, n):
        while n > 0:
            k = min(n, 16)
            self(f"s_nop {k-1}")
            n -= k
    def text(self):
        return "\n".join(self.lines) + "\n"

def kernel_header(name):
    return f""".globl {name}
.p2align 8
.type {name},@function
{name}:
"""
def kernel_desc(name, vgpr, sgpr, accum=None, wg_y=False):
    if accum is None:
        accum = (vgpr + 3) // 4 * 4
    return f""".amdhsa_kernel {name}
  .amdhsa_next_free_vgpr {vgpr}
  .amdhsa_next_free_sgpr {sgpr}
  .amdhsa_accum_offset {accum}
  .amdhsa_group_segment_fixed_size 0
  .amdhsa_kernarg_size 96
  .amdhsa_user_sgpr_count 2
  .amdhsa_user_sgpr_kernarg_segment_ptr 1
  .amdhsa_system_sgpr_workgroup_id_x 1
.end_amdhsa_kernel
"""
def srd(A, sreg, base_lo, base_hi, nbytes):
    A(f"""s_mov_b32 s{sreg}, s{base_lo}
    s_and_b32 s{sreg+1}, s{base_hi}, 0xffff
    s_mov_b32 s{sreg+2}, {nbytes}
    s_mov_b32 s{sreg+3}, 0x00020000""")
def srd_off(A, sreg, base_lo, base_hi, off, nbytes):
    A(f"""s_add_u32 s{sreg}, s{base_lo}, {off}
    s_addc_u32 s{sreg+1}, s{base_hi}, 0
    s_and_b32 s{sreg+1}, s{sreg+1}, 0xffff
    s_mov_b32 s{sreg+2}, {nbytes}
    s_mov_b32 s{sreg+3}, 0x00020000""")
```

```python
from asmlib import *
WS_XN   = 0
WS_KV   = 2 << 20
WS_KMAX = WS_KV + (128 << 10)
WS_AT   = 4 << 20
AT_PITCH = 2304 * 2
WS_BYTES = 268435456

def gen_k1(name="ln_kv_kernel"):
    A = Asm()
    A.raw(kernel_header(name).rstrip("\n"))
    NW = 4
    WREG = 8448
    SC1 = NW * WREG
    SC2 = SC1 + 1024
    RED = SC2 + 1024
    A(f"""
    s_cmp_ge_u32 s2, 64
    s_cbranch_scc1 {name}_end
    s_load_dwordx2 s[4:5], s[0:1], 0       ; x
    s_load_dwordx4 s[8:11], s[0:1], 16
    s_load_dwordx2 s[12:13], s[0:1], 88    ; ws
    v_and_b32 v1, 63, v0                   ; lane
    v_lshrrev_b32 v5, 6, v0                ; wave
    v_and_b32 v2, 31, v0                   ; m
    v_bfe_u32 v3, v0, 5, 1                 ; h
    s_nop 0
    v_readfirstlane_b32 s3, v5
    s_waitcnt lgkmcnt(0)
    """)
    srd(A, 16, 4, 5, 2048 * 1024)
    srd(A, 20, 8, 9, 512 * 32)
    srd(A, 24, 10, 11, 512 * 32)
    srd_off(A, 28, 12, 13, WS_XN, 2048 * 1024)
    srd_off(A, 32, 12, 13, WS_KV, (128 << 10) + 256)
    A(f"""
    s_lshl_b32 s36, s2, 15                 ; rb*32*1024
    s_lshl_b32 s37, s3, 8                  ; w*256
    s_add_u32 s36, s36, s37
    v_lshlrev_b32 v4, 10, v2
    v_lshl_add_u32 v4, v3, 4, v4
    v_add_u32 v4, s36, v4
    """)
    for st in range(8):
        A(f"buffer_load_dwordx4 {v(8+4*st,4)}, v4, s[16:19], 0 offen offset:{st*32}")
    A(f"""
    s_mul_i32 s38, s3, {WREG}
    s_lshl_b32 s39, s3, 12
    v_lshlrev_b32 v6, 4, v1
    """)
    for j in range(4):
        A(f"""s_add_u32 m0, s38, {j*1024}
        s_add_u32 s40, s39, {j*1024}
        buffer_load_dwordx4 v6, s[20:23], s40 offen lds""")
    for j in range(4):
        A(f"""s_add_u32 m0, s38, {4224 + j*1024}
        s_add_u32 s40, s39, {j*1024}
        buffer_load_dwordx4 v6, s[24:27], s40 offen lds""")
    A("s_waitcnt vmcnt(8)")
    for i in range(32):
        A(f"v_lshlrev_b32 v{40+2*i}, 16, v{8+i}")
        A(f"v_and_b32 v{41+2*i}, 0xffff0000, v{8+i}")
    A("v_add_f32 v104, v40, v41")
    A("v_add_f32 v105, v42, v43")
    for i in range(2, 32):
        A(f"v_add_f32 v{104 + (i%2)}, v{104 + (i%2)}, v{40+2*i}")
        A(f"v_add_f32 v{104 + (i%2)}, v{104 + (i%2)}, v{41+2*i}")
    A("v_add_f32 v104, v104, v105")
    A(f"""
    v_lshlrev_b32 v7, 5, v2
    v_lshl_add_u32 v106, v3, 2, v7
    s_lshl_b32 s40, s3, 3
    v_add_u32 v106, s40, v106
    ds_write_b32 v106, v104 offset:{SC1}
    s_waitcnt lgkmcnt(0)
    s_barrier
    ds_read_b128 v[108:111], v7 offset:{SC1}
    ds_read_b128 v[112:115], v7 offset:{SC1+16}
    s_waitcnt lgkmcnt(0)
    v_add_f32 v108, v108, v109
    v_add_f32 v110, v110, v111
    v_add_f32 v112, v112, v113
    v_add_f32 v114, v114, v115
    v_add_f32 v108, v108, v110
    v_add_f32 v112, v112, v114
    v_add_f32 v108, v108, v112
    v_mul_f32 v107, 0x3b000000, v108
    """)
    A("v_mov_b32 v104, 0")
    A("v_mov_b32 v105, 0")
    for i in range(64):
        t = 116 + (i % 4)
        A(f"v_sub_f32 v{t}, v{40+i}, v107")
        A(f"v_fmac_f32 v{104+(i%2)}, v{t}, v{t}")
    A(f"""
    v_add_f32 v104, v104, v105
    ds_write_b32 v106, v104 offset:{SC2}
    s_waitcnt lgkmcnt(0)
    s_barrier
    ds_read_b128 v[108:111], v7 offset:{SC2}
    ds_read_b128 v[112:115], v7 offset:{SC2+16}
    s_waitcnt lgkmcnt(0)
    v_add_f32 v108, v108, v109
    v_add_f32 v110, v110, v111
    v_add_f32 v112, v112, v113
    v_add_f32 v114, v114, v115
    v_add_f32 v108, v108, v110
    v_add_f32 v112, v112, v114
    v_add_f32 v108, v108, v112
    v_mul_f32 v108, 0x3b000000, v108       ; var
    v_cvt_pk_bf16_f32 v109, v108, v107
    v_and_b32 v107, 0xffff0000, v109       ; mean_b
    v_lshlrev_b32 v108, 16, v109           ; var_b
    v_add_f32 v108, 0x3727c5ac, v108       ; + 1e-5
    v_cvt_pk_bf16_f32 v108, v108, v108
    v_lshlrev_b32 v108, 16, v108
    v_sqrt_f32 v108, v108
    s_nop 0
    v_cvt_pk_bf16_f32 v108, v108, v108
    v_lshlrev_b32 v108, 16, v108           ; s (bf16)
    v_rcp_f32 v108, v108
    s_nop 0
    """)
    for i in range(32):
        t0, t1 = 116 + 2*(i % 2), 117 + 2*(i % 2)
        A(f"v_sub_f32 v{t0}, v{40+2*i}, v107")
        A(f"v_sub_f32 v{t1}, v{41+2*i}, v107")
        A(f"v_cvt_pk_bf16_f32 v{t0}, v{t0}, v{t1}")
        A(f"v_and_b32 v{t1}, 0xffff0000, v{t0}")
        A(f"v_lshlrev_b32 v{t0}, 16, v{t0}")
        A(f"v_mul_f32 v{t1}, v{t1}, v108")
        A(f"v_mul_f32 v{t0}, v{t0}, v108")
        A(f"v_cvt_pk_bf16_f32 v{8+i}, v{t0}, v{t1}")
    A(f"""s_lshl_b32 s40, s2, 15
    s_lshl_b32 s41, s3, 13
    s_add_u32 s40, s40, s41
    v_lshlrev_b32 v121, 4, v1
    v_add_u32 v121, s40, v121""")
    for st in range(8):
        A(f"buffer_store_dwordx4 {v(8+4*st,4)}, v121, s[28:31], 0 offen offset:{(st%4)*1024}")
        if st == 3: A("v_add_u32 v121, 4096, v121")
    A(f"""
    v_bfe_u32 v120, v1, 4, 1               ; g%2
    v_mul_u32_u24 v120, 4224, v120
    v_bfe_u32 v121, v1, 2, 2               ; r
    v_lshl_add_u32 v121, v3, 3, v121       ; 8h + r
    v_lshl_add_u32 v120, v121, 5, v120
    v_and_b32 v121, 3, v1
    v_lshl_add_u32 v120, v121, 3, v120
    v_add_u32 v120, s38, v120
    s_waitcnt vmcnt(8)
    """)
    for st in range(8):
        A(f"ds_read_b64_tr_b16 {v(40+4*st,2)}, v120 offset:{st*512}")
        A(f"ds_read_b64_tr_b16 {v(42+4*st,2)}, v120 offset:{st*512+128}")
    A("s_waitcnt lgkmcnt(0)")
    D1, D2 = 128, 144
    for st in range(8):
        c1 = "0" if st == 0 else v(D1,16)
        c2 = "0" if st == 0 else v(D2,16)
        A(f"v_mfma_f32_32x32x16_bf16 {v(D1,16)}, {v(40+4*st,4)}, {v(8+4*st,4)}, {c1}")
        A(f"v_mfma_f32_32x32x16_bf16 {v(D2,16)}, {v(8+4*st,4)}, {v(40+4*st,4)}, {c2}")
    A.nop(16)
    A(f"""
    s_mul_i32 s40, s3, 6144
    v_lshlrev_b32 v6, 4, v1
    v_add_u32 v121, s40, v6
    ds_write_b128 v121, {v(D1,4)} offset:{RED}
    ds_write_b128 v121, {v(D1+4,4)} offset:{RED+1024}
    ds_write_b128 v121, {v(D2,4)} offset:{RED+2048}
    ds_write_b128 v121, {v(D2+4,4)} offset:{RED+3072}
    ds_write_b128 v121, {v(D2+8,4)} offset:{RED+4096}
    ds_write_b128 v121, {v(D2+12,4)} offset:{RED+5120}
    s_waitcnt lgkmcnt(0)
    s_barrier
    s_cmp_ge_u32 s3, 3
    s_cbranch_scc1 {name}_end
    s_lshl_b32 s40, s3, 11
    v_add_u32 v121, s40, v6
    """)
    for ww in range(4):
        A(f"ds_read_b128 {v(40+8*ww,4)}, v121 offset:{RED + ww*6144}")
        A(f"ds_read_b128 {v(44+8*ww,4)}, v121 offset:{RED + ww*6144 + 1024}")
    A("s_waitcnt lgkmcnt(0)")
    for i in range(8):
        A(f"v_add_f32 v{40+i}, v{40+i}, v{48+i}")
        A(f"v_add_f32 v{56+i}, v{56+i}, v{64+i}")
    for i in range(8):
        A(f"v_add_f32 v{40+i}, v{40+i}, v{56+i}")
    for i in range(4):
        A(f"v_cvt_pk_bf16_f32 v{72+i}, v{40+2*i}, v{41+2*i}")
    A(f"""
    s_lshl_b32 s41, s2, 11                 ; rb*2048
    s_cmp_lg_u32 s3, 0
    s_cbranch_scc1 {name}_vstore
    v_add_u32 v76, s41, v6
    buffer_store_dwordx4 v[72:75], v76, s[32:35], 0 offen
    v_mul_f32 v77, v40, v40
    """)
    for i in range(1, 8):
        A(f"v_fmac_f32 v77, v{40+i}, v{40+i}")
    A(f"""
    v_mov_b32 v78, v77
    s_nop 1
    v_permlane32_swap_b32 v77, v78
    v_add_f32 v77, v77, v78
    """)
    A(f"""
    s_nop 1
    v_max_f32_dpp v77, v77, v77 row_shr:1 row_mask:0xf bank_mask:0xf
    s_nop 1
    v_max_f32_dpp v77, v77, v77 row_shr:2 row_mask:0xf bank_mask:0xf
    s_nop 1
    v_max_f32_dpp v77, v77, v77 row_shr:4 row_mask:0xf bank_mask:0xf
    s_nop 1
    v_max_f32_dpp v77, v77, v77 row_shr:8 row_mask:0xf bank_mask:0xf
    s_nop 1
    v_readlane_b32 s42, v77, 15
    v_readlane_b32 s43, v77, 31
    s_nop 1
    v_mov_b32 v78, s42
    v_max_f32 v78, s43, v78
    s_lshl_b32 s44, s2, 2
    s_add_u32 s44, s44, {128<<10}
    v_mov_b32 v79, s44
    v_cmp_eq_u32 vcc, 0, v1
    s_and_saveexec_b64 s[46:47], vcc
    buffer_store_dword v78, v79, s[32:35], 0 offen
    s_endpgm
    """)
    A.label(f"{name}_vstore")
    A(f"""
    s_sub_u32 s42, s3, 1
    s_lshl_b32 s42, s42, 9
    s_add_u32 s42, s42, s41
    s_add_u32 s42, s42, {1024 - 256}
    v_lshlrev_b32 v76, 4, v2
    v_lshl_add_u32 v76, v3, 8, v76
    v_add_u32 v76, s42, v76
    v_cmp_le_u32 vcc, 16, v2
    s_and_saveexec_b64 s[46:47], vcc
    buffer_store_dwordx4 v[72:75], v76, s[32:35], 0 offen
    """)
    A.label(f"{name}_end")
    A("s_endpgm")
    return A.text(), kernel_desc(name, 160, 64)
```

```python
from asmlib import *
from k1 import WS_XN, WS_KV, WS_KMAX, WS_AT, AT_PITCH, WS_BYTES
import math
def f2u(x):
    import struct
    return struct.unpack("<I", struct.pack("<f", x))[0]

Sa, Sb, Oa, Ob, Ca, Cb, Pa, Pb, Qa, Qb, Kf, Vf = 16, 32, 48, 64, 80, 96, 112, 120, 128, 132, 136, 144
vKc, vKn, vVc, vVn = 160, 161, 162, 163
vKl, vVl = 164, 165
XF, QD, WF = 16, 144, 168
NV = 184
SLOT = 16384

def att_stage(A, i):
    par = i % 2
    kcur, knxt = Kf + 4*par, Kf + 4*(1-par)
    vcur, vprev = Vf + 8*par, Vf + 8*(1-par)
    E = lambda S, k: A(f"v_exp_f32 v{S+k}, v{S+k}")
    C = lambda P, S, k: A(f"v_cvt_pk_bf16_f32 v{P+k}, v{S+2*k}, v{S+2*k+1}")
    M = lambda D, a_, b_, c_: A(f"v_mfma_f32_32x32x16_bf16 {v(D,16)}, {v(a_,4)}, {v(b_,4)}, {v(c_,16)}")
    E(Sa,0); E(Sa,1)
    M(Ob, vprev+4, Pb+4, Ob)
    for k in range(2,6): E(Sa,k)
    M(Sb, kcur, Qb, Cb)
    if i == 6:
        A("s_waitcnt vmcnt(0)")
        A("s_barrier")
        A.chunk_issue()
    A("s_waitcnt lgkmcnt(0)")
    kt = i + 2
    A(f"ds_read_b128 {v(kcur,4)}, v{vKc if kt < 8 else vKn} offset:{(kt % 8)*2048}")
    vt = i + 1
    va = vVc if vt < 8 else vVn
    A("s_mov_b64 exec, s[60:61]")
    A(f"ds_read_b128 {v(vprev,4)}, v{va} offset:{(vt % 8)*2048 + 1024}")
    A(f"ds_read_b128 {v(vprev+4,4)}, v{va} offset:{(vt % 8)*2048 + 1536}")
    A("s_mov_b64 exec, -1")
    E(Sa,6); E(Sa,7)
    for k in range(4): C(Pa,Sa,k)
    E(Sa,8); E(Sa,9)
    M(Oa, vcur, Pa, Oa)
    for k in range(10,16): E(Sa,k)
    for k in range(4,8): C(Pa,Sa,k)
    E(Sb,0); E(Sb,1)
    M(Oa, vcur+4, Pa+4, Oa)
    for k in range(2,6): E(Sb,k)
    M(Sa, knxt, Qa, Ca)
    E(Sb,6); E(Sb,7)
    for k in range(4): C(Pb,Sb,k)
    E(Sb,8); E(Sb,9)
    M(Ob, vcur, Pb, Ob)
    for k in range(10,16): E(Sb,k)
    for k in range(4,8): C(Pb,Sb,k)

def lane_reduce_max(A, vr, tmp_s0, out_s):
    for sh in (1,2,4,8):
        A("s_nop 1")
        A(f"v_max_f32_dpp v{vr}, v{vr}, v{vr} row_shr:{sh} row_mask:0xf bank_mask:0xf")
    A("s_nop 1")
    A(f"""v_readlane_b32 s{tmp_s0}, v{vr}, 15
    v_readlane_b32 s{tmp_s0+1}, v{vr}, 31
    v_readlane_b32 s{tmp_s0+2}, v{vr}, 47
    v_readlane_b32 s{tmp_s0+3}, v{vr}, 63
    s_nop 1
    v_mov_b32 v{vr}, s{tmp_s0}
    v_max_f32 v{vr}, s{tmp_s0+1}, v{vr}
    v_max_f32 v{vr}, s{tmp_s0+2}, v{vr}
    v_max_f32 v{vr}, s{tmp_s0+3}, v{vr}
    s_nop 0
    v_readfirstlane_b32 s{out_s}, v{vr}""")

def gen_att(name="att_kernel", nwg=256, standalone=True, stamps=False):
    A = Asm()
    def stamp(i):
        if stamps:
            A(f"s_memtime s[{70+2*i}:{71+2*i}]")
            if i in (0, 5): A(f"s_memrealtime s[{84+(2 if i else 0)}:{85+(2 if i else 0)}]")
    A.stamp = stamp
    if standalone:
        A.raw(kernel_header(name).rstrip("\n"))
        A(f"""s_cmp_ge_u32 s2, {nwg}
        s_cbranch_scc1 {name}_end""")
    stamp(0)
    A(f"""
    s_load_dwordx2 s[4:5], s[0:1], 8       ; wq
    s_load_dwordx2 s[12:13], s[0:1], 88    ; ws
    v_and_b32 v1, 63, v0                   ; lane
    v_lshrrev_b32 v5, 6, v0                ; wave
    v_and_b32 v2, 31, v0                   ; m
    v_bfe_u32 v3, v0, 5, 1                 ; h
    s_nop 0
    v_readfirstlane_b32 s3, v5
    s_lshr_b32 s36, s2, 5                  ; hg
    s_and_b32 s37, s2, 31                  ; rb2
    s_and_b32 s38, s3, 1                   ; rh
    s_lshr_b32 s39, s3, 1                  ; hp
    s_mov_b32 s60, 0x0000ffff
    s_mov_b32 s61, 0x0000ffff
    s_waitcnt lgkmcnt(0)
    """)
    stamp(1)
    srd(A, 16, 4, 5, 512 * 1024)
    srd_off(A, 20, 12, 13, WS_XN, 2048 * 1024)
    srd_off(A, 24, 12, 13, WS_KV, (128 << 10) + 256)
    srd_off(A, 28, 12, 13, WS_AT, 2048 * AT_PITCH)
    A(f"""
    v_lshlrev_b32 v6, 4, v1                ; lane*16
    s_lshl_b32 s40, s3, 12                 ; w*4096
    """)
    for j in range(4):
        A(f"""s_add_u32 m0, s40, {4*SLOT + j*1024}
        s_add_u32 s41, s40, {j*1024}
        buffer_load_dwordx4 v6, s[24:27], s41 offen lds""")
    A(f"""v_lshlrev_b32 v7, 2, v1
    buffer_load_dword v8, v7, s[24:27], 0 offen offset:0
    """)
    A.lines.pop()
    A(f"""s_mov_b32 s41, {128<<10}
    buffer_load_dword v8, v7, s[24:27], s41 offen""")
    A(f"""
    v_lshrrev_b32 v9, 3, v1                ; r8
    v_bfe_u32 v10, v1, 2, 1                ; pos
    v_bfe_u32 v11, v1, 4, 1                ; (r8>>1)&1
    v_xor_b32 v10, v10, v11                ; q
    v_lshlrev_b32 v9, 10, v9               ; r8*1024
    v_lshl_add_u32 v9, v10, 6, v9
    v_and_b32 v10, 3, v1
    v_lshl_add_u32 v9, v10, 4, v9
    s_lshl_b32 s41, s36, 7                 ; hg*128
    v_add_u32 v9, s41, v9
    s_lshl_b32 s42, s3, 17                 ; w*16*8*1024 global
    s_lshl_b32 s43, s3, 14                 ; w*16*1024 lds
    """)
    for j in range(16):
        A(f"""s_add_u32 m0, s43, {j*1024}
        s_add_u32 s41, s42, {j*8192}
        buffer_load_dwordx4 v9, s[16:19], s41 offen lds""")
    A(f"""
    s_lshl_b32 s41, s37, 16
    s_lshl_b32 s42, s38, 15
    s_add_u32 s44, s41, s42                ; rb*32768
    """)
    for st in range(32):
        if st % 4 == 0: A(f"s_add_u32 s41, s44, {st*1024}")
        A(f"buffer_load_dwordx4 {v(XF+4*st,4)}, v6, s[20:23], s41 offen offset:{(st%4)*1024}")
    stamp(2)
    A(f"""
    v_bfe_u32 v11, v1, 2, 2                ; r
    v_lshl_add_u32 v12, v3, 3, v11         ; 8h + r
    v_lshlrev_b32 v12, 7, v12
    v_lshrrev_b32 v11, 1, v11              ; r>>1
    v_xor_b32 v11, s39, v11
    v_lshl_add_u32 v12, v11, 6, v12
    v_bfe_u32 v11, v1, 4, 1
    v_lshl_add_u32 v12, v11, 5, v12
    v_and_b32 v11, 3, v1
    v_lshl_add_u32 v12, v11, 3, v12
    v_mov_b32 v{vKl}, v6
    v_and_b32 v11, 15, v1
    v_lshlrev_b32 v11, 4, v11
    v_lshl_add_u32 v{vVl}, v3, 8, v11
    s_waitcnt vmcnt(32)
    """)
    stamp(3)
    A("s_barrier")
    stamp(4)
    lane_reduce_max(A, 8, 44+4, 62)
    A(f"ds_read_b64_tr_b16 {v(WF,2)}, v12 offset:0")
    A(f"ds_read_b64_tr_b16 {v(WF+2,2)}, v12 offset:512")
    for st in range(32):
        cur = WF + 4*(st % 4)
        nx = WF + 4*((st+1) % 4)
        if st + 1 < 32:
            A(f"ds_read_b64_tr_b16 {v(nx,2)}, v12 offset:{(st+1)*2048}")
            A(f"ds_read_b64_tr_b16 {v(nx+2,2)}, v12 offset:{(st+1)*2048+512}")
            A(f"s_waitcnt vmcnt({31-st}) lgkmcnt(2)")
        else:
            A(f"s_waitcnt vmcnt(0) lgkmcnt(0)")
        c_ = "0" if st == 0 else v(QD,16)
        A(f"v_mfma_f32_32x32x16_bf16 {v(QD,16)}, {v(cur,4)}, {v(XF+4*st,4)}, {c_}")
    A("s_barrier")
    for cch in range(1, 5):
        for j in range(4):
            A(f"""s_add_u32 m0, s40, {(cch-1)*SLOT + j*1024}
            s_add_u32 s41, s40, {cch*SLOT + j*1024}
            buffer_load_dwordx4 v6, s[24:27], s41 offen lds""")
    cq = 0.25 * math.log2(math.e)
    A(f"s_mov_b32 s41, {f2u(cq)}")
    for i in range(16):
        A(f"v_mul_f32 v{QD+i}, s41, v{QD+i}")
    for (Q, off, nreg) in ((Qa, 0, 13), (Qb, 8, 14)):
        A(f"v_mul_f32 v{nreg}, v{QD+off}, v{QD+off}")
        for i in range(1, 8):
            A(f"v_fmac_f32 v{nreg}, v{QD+off+i}, v{QD+off+i}")
        for i in range(4):
            A(f"v_cvt_pk_bf16_f32 v{Q+i}, v{QD+off+2*i}, v{QD+off+2*i+1}")
    for nreg in (13, 14):
        A(f"""v_mov_b32 v15, v{nreg}
        s_nop 1
        v_permlane32_swap_b32 v{nreg}, v15
        v_add_f32 v{nreg}, v{nreg}, v15
        v_mul_f32 v{nreg}, s62, v{nreg}
        v_sqrt_f32 v{nreg}, v{nreg}
        s_nop 0
        v_mul_f32 v{nreg}, 0x3f828f5c, v{nreg}
        """)
    A(f"""
    v_max_f32 v15, v13, v14
    v_cmp_lt_f32 vcc, 0x42200000, v15      ; 40.0 < B
    s_cmp_lg_u64 vcc, 0
    s_cbranch_scc0 {name}_fast
    """)
    A(f"""
    v_mov_b32 v13, 0xff800000
    v_mov_b32 v14, 0xff800000
    s_mov_b32 s41, 0
    """)
    A.label(f"{name}_slow")
    A(f"""
    buffer_load_dwordx4 {v(WF,4)}, v6, s[24:27], s41 offen
    s_waitcnt vmcnt(0)
    v_mfma_f32_32x32x16_bf16 {v(Sa,16)}, {v(WF,4)}, {v(Qa,4)}, 0
    v_mfma_f32_32x32x16_bf16 {v(Sb,16)}, {v(WF,4)}, {v(Qb,4)}, 0
    s_nop 15
    s_nop 7
    """)
    for i in range(8):
        A(f"v_max3_f32 v13, v{Sa+2*i}, v{Sa+2*i+1}, v13")
        A(f"v_max3_f32 v14, v{Sb+2*i}, v{Sb+2*i+1}, v14")
    A(f"""
    s_add_u32 s41, s41, 2048
    s_cmp_lt_u32 s41, {128<<10}
    s_cbranch_scc1 {name}_slow
    """)
    for nreg in (13, 14):
        A(f"""v_mov_b32 v15, v{nreg}
        s_nop 1
        v_permlane32_swap_b32 v{nreg}, v15
        v_max_f32 v{nreg}, v{nreg}, v15
        """)
    A.label(f"{name}_fast")
    for i in range(16):
        A(f"v_sub_f32 v{Ca+i}, 0, v13")
        A(f"v_sub_f32 v{Cb+i}, 0, v14")
    for i in range(16):
        A(f"v_mov_b32 v{Oa+i}, 0")
        A(f"v_mov_b32 v{Ob+i}, 0")
    for i in range(8):
        A(f"v_mov_b32 v{Pb+i}, 0")
    A(f"""
    v_mov_b32 v15, 0x3f803f80
    v_cmp_le_u32 vcc, 16, v2
    s_nop 1
    """)
    for i in range(16):
        A(f"v_cndmask_b32 v{Vf+i}, 0, v15, vcc")
    A(f"""
    s_mov_b32 s50, {4*SLOT}
    s_mov_b32 s51, 0
    s_mov_b32 s52, 0
    v_add_u32 v{vKc}, s50, v{vKl}
    v_add_u32 v{vVc}, s50, v{vVl}
    v_add_u32 v{vKn}, s51, v{vKl}
    v_add_u32 v{vVn}, s51, v{vVl}
    ds_read_b128 {v(Kf,4)}, v{vKc} offset:0
    ds_read_b128 {v(Kf+4,4)}, v{vKc} offset:2048
    s_mov_b64 exec, s[60:61]
    ds_read_b128 {v(Vf,4)}, v{vVc} offset:1024
    ds_read_b128 {v(Vf+4,4)}, v{vVc} offset:1536
    s_mov_b64 exec, -1
    s_waitcnt lgkmcnt(0)
    v_mfma_f32_32x32x16_bf16 {v(Sa,16)}, {v(Kf,4)}, {v(Qa,4)}, {v(Ca,16)}
    s_nop 15
    """)
    def chunk_issue():
        lab = A.newlabel(f"{name}_noissue")
        A(f"""
        s_add_u32 s53, s52, -1
        s_cmp_gt_u32 s53, 2
        s_cbranch_scc1 {lab}
        s_lshl_b32 s54, s53, 14            ; slot(c+4) = (c+8)%5 = (c+3)%5 ; c=1->4, c=2->0, c=3->1
        s_cmp_eq_u32 s53, 0
        s_cselect_b32 s54, {4*SLOT}, s54
        s_cselect_b32 s55, 0, {SLOT}
        s_sub_u32 s54, s54, s55            ; c=2: (1<<14)-(1<<14)=0 ; c=3: 2<<14 - 1<<14 = 1<<14
        s_add_u32 s54, s54, s40
        s_add_u32 s55, s52, 4
        s_lshl_b32 s55, s55, 14
        s_add_u32 s55, s55, s40
        """)
        for j in range(4):
            A(f"""s_add_u32 m0, s54, {j*1024}
            s_add_u32 s41, s55, {j*1024}
            buffer_load_dwordx4 v6, s[24:27], s41 offen lds""")
        A.label(lab)
    A.chunk_issue = chunk_issue
    A.raw(".p2align 6")
    A.label(f"{name}_loop")
    for i in range(8):
        att_stage(A, i)
    A(f"""
    s_mov_b32 s50, s51
    s_add_u32 s51, s51, {SLOT}
    s_cmp_ge_u32 s51, {5*SLOT}
    s_cselect_b32 s51, 0, s51
    v_mov_b32 v{vKc}, v{vKn}
    v_mov_b32 v{vVc}, v{vVn}
    v_add_u32 v{vKn}, s51, v{vKl}
    v_add_u32 v{vVn}, s51, v{vVl}
    s_add_u32 s52, s52, 1
    s_cmp_lt_u32 s52, 8
    s_cbranch_scc1 {name}_loop
    """)
    A(f"v_mfma_f32_32x32x16_bf16 {v(Ob,16)}, {v(Vf+8+4,4)}, {v(Pb+4,4)}, {v(Ob,16)}")
    A.nop(20)
    A(f"""
    s_lshl_b32 s41, s37, 1
    s_add_u32 s41, s41, s38                ; rb
    s_mul_i32 s41, s41, {144*1024}
    s_lshl_b32 s42, s36, 12
    s_lshl_b32 s43, s39, 11                ; hp*2*1024
    s_add_u32 s41, s41, s42
    s_add_u32 s41, s41, s43
    v_add_u32 v10, s41, v6
    """)
    for (O, P, off) in ((Oa, Pa, 0), (Ob, Pb, 1024)):
        A(f"v_rcp_f32 v15, v{O+8}")
        A("s_nop 0")
        for i in range(8):
            A(f"v_mul_f32 v{O+i}, v{O+i}, v15")
        for i in range(4):
            A(f"v_cvt_pk_bf16_f32 v{P+i}, v{O+2*i}, v{O+2*i+1}")
        A(f"buffer_store_dwordx4 {v(P,4)}, v10, s[28:31], 0 offen offset:{off}")
    if stamps:
        A("s_waitcnt vmcnt(0)")
        stamp(5)
        A("s_waitcnt lgkmcnt(0)")
        A(f"""s_add_u32 s90, s12, {200<<20}
        s_addc_u32 s91, s13, 0
        s_lshl_b32 s92, s2, 2
        s_add_u32 s92, s92, s3
        s_lshl_b32 s92, s92, 6
        v_mov_b32 v20, s92
        v_cmp_eq_u32 vcc, 0, v1
        s_and_saveexec_b64 s[46:47], vcc""")
        for i in range(6):
            A(f"v_mov_b32 v21, s{70+2*i}")
            A(f"global_store_dword v20, v21, s[90:91] offset:{4*i}")
        A(f"v_mov_b32 v21, s84")
        A(f"global_store_dword v20, v21, s[90:91] offset:24")
        A(f"v_mov_b32 v21, s86")
        A(f"global_store_dword v20, v21, s[90:91] offset:28")
    if standalone:
        A.label(f"{name}_end")
        A("s_endpgm")
    return A.text(), kernel_desc(name, NV, 100)
```

```python
from asmlib import *
from k1 import WS_XN, WS_KV, WS_KMAX, WS_AT, AT_PITCH, WS_BYTES
ACC = 16
BF = 80
AF = 144
NV = 184
NST = 18
RING = 4
def gen_fin(name="fin_kernel", nwg=256):
    A = Asm()
    A.raw(kernel_header(name).rstrip("\n"))
    A(f"""s_cmp_ge_u32 s2, {nwg}
    s_cbranch_scc1 {name}_end
    s_load_dwordx2 s[4:5], s[0:1], 0       ; x
    s_load_dwordx2 s[6:7], s[0:1], 32      ; wo
    s_load_dwordx4 s[8:11], s[0:1], 64
    s_load_dwordx2 s[12:13], s[0:1], 88    ; ws
    v_and_b32 v1, 63, v0                   ; lane
    v_lshrrev_b32 v5, 6, v0                ; wave
    v_and_b32 v2, 31, v0                   ; m
    v_bfe_u32 v3, v0, 5, 1                 ; h
    s_nop 0
    v_readfirstlane_b32 s3, v5
    s_and_b32 s36, s2, 7
    s_lshr_b32 s37, s2, 3                  ; rb2
    s_waitcnt lgkmcnt(0)
    """)
    srd(A, 16, 4, 5, 2048 * 1024)
    srd(A, 20, 10, 11, 2048 * 1024)
    srd_off(A, 24, 12, 13, WS_AT, 2048 * AT_PITCH)
    A(f"""
    s_and_b32 s7, s7, 0xffff
    s_sub_u32 s8, s8, {512*1024}
    s_subb_u32 s9, s9, 0
    s_and_b32 s9, s9, 0xffff
    s_mov_b32 s31, 0x00020000
    s_mov_b32 s14, {512*1024}
    s_mov_b32 s15, {2304*1024}
    v_lshlrev_b32 v6, 4, v1                ; lane*16
    ; W DMA lane offset: instr covers 8 rows x 128B: r8=i/8, pos=(i%8)/4, sub=i%4, q = pos ^ ((r8>>1)&1)
    v_lshrrev_b32 v9, 3, v1
    v_bfe_u32 v10, v1, 2, 1
    v_bfe_u32 v11, v1, 4, 1
    v_xor_b32 v10, v10, v11
    v_lshlrev_b32 v9, 10, v9
    v_lshl_add_u32 v9, v10, 6, v9
    v_and_b32 v10, 3, v1
    v_lshl_add_u32 v9, v10, 4, v9
    s_lshl_b32 s40, s36, 7
    v_add_u32 v9, s40, v9                  ; + nb*128
    s_mul_i32 s41, s3, {36*16}
    s_mul_i32 s42, s3, {36*1024}
    s_lshl_b32 s43, s37, 1
    s_mul_i32 s43, s43, {144*1024}
    s_add_u32 s42, s42, s43
    s_lshl_b32 s44, s3, 14
    ; A read addr: k*128 + (nt ^ (r>>1))*64 + (g%2)*32 + c*8 ; k = 4h + r
    v_bfe_u32 v10, v1, 2, 2                ; r
    v_lshl_add_u32 v11, v3, 2, v10         ; 4h + r
    v_lshlrev_b32 v11, 7, v11
    v_bfe_u32 v12, v1, 4, 1
    v_lshl_add_u32 v11, v12, 5, v11
    v_and_b32 v12, 3, v1
    v_lshl_add_u32 v11, v12, 3, v11
    v_add_u32 v11, s44, v11
    v_lshrrev_b32 v10, 1, v10              ; r>>1
    v_lshl_add_u32 v12, v10, 6, v11        ; nt=0
    v_xor_b32 v10, 1, v10
    v_lshl_add_u32 v13, v10, 6, v11        ; nt=1
    """)
    def issue(st):
        slot = st % RING
        A(f"""
        s_cmp_lt_u32 s41, 512
        s_cselect_b32 s28, s6, s8
        s_cselect_b32 s29, s7, s9
        s_cselect_b32 s30, s14, s15
        s_lshl_b32 s45, s41, 10
        """)
        for j in range(4):
            A(f"""s_add_u32 m0, s44, {slot*4096 + j*1024}
            s_add_u32 s46, s45, {j*8192}
            buffer_load_dwordx4 v9, s[28:31], s46 offen lds""")
        for ks in range(2):
            for mt in range(2):
                A(f"s_add_u32 s46, s42, {mt*144*1024 + ks*1024}")
                A(f"buffer_load_dwordx4 {v(BF+16*slot+8*ks+4*mt,4)}, v6, s[24:27], s46 offen")
        A(f"""s_add_u32 s41, s41, 32
        s_add_u32 s42, s42, 2048""")
    for st in range(RING-1):
        issue(st)
    A(f"""
    s_and_b32 s47, s3, 1
    s_lshr_b32 s48, s3, 1
    s_lshl_b32 s49, s37, 6
    s_lshl_b32 s50, s47, 5
    s_add_u32 s49, s49, s50
    s_lshl_b32 s49, s49, 10                ; row0*1024
    s_lshl_b32 s50, s36, 7
    s_add_u32 s49, s49, s50
    s_lshl_b32 s50, s48, 6
    s_add_u32 s49, s49, s50
    v_lshlrev_b32 v14, 10, v2
    v_add_u32 v14, s49, v14
    v_lshl_add_u32 v15, v3, 3, v14         ; + h*8
    """)
    for j in range(4):
        A(f"buffer_load_dwordx2 {v(176+2*j,2)}, v15, s[16:19], 0 offen offset:{16*j}")
    for st in range(NST):
        slot = st % RING
        n_after = 0
        for s2 in range(st+1, min(st+RING-1, NST)):
            n_after += 8
        if st <= RING-2: n_after += 4
        A(f"s_waitcnt vmcnt({n_after})")
        ab = AF + 16*(st % 2)
        for ks in range(2):
            for nt in range(2):
                fr = ab + 8*ks + 4*nt
                off = slot*4096 + ks*2048
                A(f"ds_read_b64_tr_b16 {v(fr,2)}, v{12+nt} offset:{off}")
                A(f"ds_read_b64_tr_b16 {v(fr+2,2)}, v{12+nt} offset:{off+1024}")
        for ks in range(2):
            A(f"s_waitcnt lgkmcnt({4 if ks == 0 else 0})")
            if ks == 1 and st + RING - 1 < NST:
                issue(st + RING - 1)
            for nt in range(2):
                for mt in range(2):
                    D = ACC + 16*(nt*2+mt)
                    c_ = "0" if (st == 0 and ks == 0) else v(D,16)
                    A(f"v_mfma_f32_32x32x16_bf16 {v(D,16)}, {v(ab+8*ks+4*nt,4)}, {v(BF+16*slot+8*ks+4*mt,4)}, {c_}")
    A.nop(16)
    A("s_barrier")
    A("v_add_u32 v7, s44, v6")
    for t in range(4):
        for qd in range(4):
            A(f"ds_write_b128 v7, {v(ACC+16*t+4*qd,4)} offset:{t*4096+qd*1024}")
    A(f"""s_waitcnt lgkmcnt(0)
    s_barrier
    s_lshl_b32 s50, s3, 12
    v_add_u32 v7, s50, v6
    """)
    for ww in range(4):
        for qd in range(4):
            A(f"ds_read_b128 {v(ACC+16*ww+4*qd,4)}, v7 offset:{ww*16384+qd*1024}")
    A("s_waitcnt lgkmcnt(0) vmcnt(0)")
    for i in range(16):
        A(f"v_add_f32 v{ACC+i}, v{ACC+i}, v{ACC+16+i}")
        A(f"v_add_f32 v{ACC+32+i}, v{ACC+32+i}, v{ACC+48+i}")
    for j in range(4):
        A(f"v_lshlrev_b32 v{80+4*j}, 16, v{176+2*j}")
        A(f"v_and_b32 v{81+4*j}, 0xffff0000, v{176+2*j}")
        A(f"v_lshlrev_b32 v{82+4*j}, 16, v{177+2*j}")
        A(f"v_and_b32 v{83+4*j}, 0xffff0000, v{177+2*j}")
    for i in range(16):
        A(f"v_add_f32 v{ACC+i}, v{ACC+i}, v{ACC+32+i}")
    for i in range(16):
        A(f"v_add_f32 v{ACC+i}, v{ACC+i}, v{80+i}")
    for i in range(8):
        A(f"v_cvt_pk_bf16_f32 v{96+i}, v{ACC+2*i}, v{ACC+2*i+1}")
    A(f"""s_nop 1
    v_permlane32_swap_b32 v96, v98
    v_permlane32_swap_b32 v97, v99
    v_permlane32_swap_b32 v100, v102
    v_permlane32_swap_b32 v101, v103
    v_lshl_add_u32 v15, v3, 4, v14
    buffer_store_dwordx4 v[96:99], v15, s[20:23], 0 offen
    buffer_store_dwordx4 v[100:103], v15, s[20:23], 0 offen offset:32
    """)
    A.label(f"{name}_end")
    A("s_endpgm")
    return A.text(), kernel_desc(name, NV, 64)
```

```python
from asmlib import *
from k1 import WS_XN, WS_KV, WS_KMAX, WS_AT, AT_PITCH, WS_BYTES
from katt import f2u
import math
ACC = 16
AF = 144
BF = 176
NV = 200
STG = 24576
def acc(gu, ft, mt): return ACC + 16 * ((gu * 2 + ft) * 2 + mt)

def gen_up(name="up_kernel", nwg=224, standalone=True, idreg="s2"):
    A = Asm()
    if standalone:
        A.raw(kernel_header(name).rstrip("\n"))
        A(f"""s_cmp_ge_u32 {idreg}, {nwg}
        s_cbranch_scc1 {name}_end""")
    A(f"""
    s_load_dwordx4 s[4:7], s[0:1], 48
    s_load_dwordx2 s[12:13], s[0:1], 88    ; ws
    v_and_b32 v1, 63, v0                   ; lane
    v_lshrrev_b32 v5, 6, v0                ; wave
    v_bfe_u32 v3, v0, 5, 1                 ; h
    s_nop 0
    v_readfirstlane_b32 s3, v5
    ; id = x + 8j : mb = (x%4)*4 + j%4 ; fb = (x/4)*7 + j/4
    s_and_b32 s36, {idreg}, 7              ; x
    s_lshr_b32 s37, {idreg}, 3             ; j
    s_and_b32 s38, s36, 3
    s_lshl_b32 s38, s38, 2
    s_and_b32 s39, s37, 3
    s_add_u32 s38, s38, s39                ; mb
    s_lshr_b32 s39, s36, 2
    s_mul_i32 s39, s39, 7
    s_lshr_b32 s37, s37, 2
    s_add_u32 s39, s39, s37                ; fb
    s_and_b32 s36, s3, 1                   ; wm
    s_lshr_b32 s37, s3, 1                  ; wf
    s_waitcnt lgkmcnt(0)
    """)
    srd(A, 16, 4, 5, 512 * 3584)
    srd(A, 20, 6, 7, 512 * 3584)
    srd_off(A, 24, 12, 13, WS_XN, 2048 * 1024)
    srd_off(A, 28, 12, 13, WS_AT, 2048 * AT_PITCH)
    A(f"""
    v_lshlrev_b32 v6, 4, v1                ; lane*16
    v_lshrrev_b32 v7, 4, v1                ; r
    v_bfe_u32 v8, v1, 2, 2                 ; pos
    v_xor_b32 v8, v8, v7                   ; q
    s_mov_b32 s40, 3584
    v_mul_lo_u32 v7, v7, s40               ; r*3584
    v_lshl_add_u32 v7, v8, 6, v7
    v_and_b32 v8, 3, v1
    v_lshl_add_u32 v7, v8, 4, v7
    s_lshl_b32 s41, s38, 2
    s_add_u32 s41, s41, s3
    s_lshl_b32 s41, s41, 15
    s_mul_i32 s42, s3, {8*3584}
    s_lshl_b32 s43, s39, 8
    s_add_u32 s42, s42, s43
    s_lshl_b32 s44, s3, 11
    s_lshl_b32 s45, s3, 11
    s_add_u32 s45, s45, 8192
    """)
    def issue(slot_s):
        A(f"""
        s_add_u32 s46, {slot_s}, s44
        s_mov_b32 m0, s46
        s_add_u32 s47, {slot_s}, s45
        buffer_load_dwordx4 v6, s[24:27], s41 offen lds
        s_add_u32 m0, s46, 1024
        s_add_u32 s48, s41, 1024
        buffer_load_dwordx4 v6, s[24:27], s48 offen lds
        s_mov_b32 m0, s47
        s_add_u32 s48, s42, {4*3584}
        buffer_load_dwordx4 v7, s[16:19], s42 offen lds
        s_add_u32 m0, s47, 1024
        s_add_u32 s41, s41, 2048
        buffer_load_dwordx4 v7, s[16:19], s48 offen lds
        s_add_u32 m0, s47, 8192
        s_nop 0
        buffer_load_dwordx4 v7, s[20:23], s42 offen lds
        s_add_u32 m0, s47, 9216
        s_add_u32 s42, s42, {32*3584}
        buffer_load_dwordx4 v7, s[20:23], s48 offen lds
        """)
    A("s_mov_b32 s50, 0")
    issue("s50")
    A(f"s_mov_b32 s50, {STG}")
    issue("s50")
    A(f"""
    v_bfe_u32 v8, v1, 2, 2                 ; r
    v_lshl_add_u32 v9, v3, 3, v8           ; 8h + r
    v_lshlrev_b32 v9, 8, v9
    v_bfe_u32 v10, v1, 4, 1
    v_lshl_add_u32 v9, v10, 5, v9
    v_and_b32 v10, 3, v1
    v_lshl_add_u32 v9, v10, 3, v9
    v_add_u32 v9, 8192, v9
    s_lshl_b32 s46, s37, 1                 ; 2wf
    v_xor_b32 v10, s46, v8                 ; q0^r
    v_xor_b32 v11, 1, v10                  ; q1^r
    v_lshl_add_u32 v10, v10, 6, v9
    v_lshl_add_u32 v11, v11, 6, v9
    s_lshl_b32 s46, s36, 12
    v_add_u32 v12, s46, v6
    s_mov_b32 s50, 0
    s_mov_b32 s51, {2*STG}
    s_mov_b32 s52, 0                       ; stage
    """)
    for i in range(128):
        A(f"v_mov_b32 v{ACC+i}, 0")
    A.raw(".p2align 6")
    A.label(f"{name}_loop")
    A(f"""
    s_cmp_lt_u32 s52, 15
    s_cbranch_scc1 {name}_w6
    s_waitcnt vmcnt(0)
    """)
    A.label(f"{name}_w6")
    A(f"""
    s_waitcnt vmcnt(6)
    s_barrier
    v_add_u32 v13, s50, v10
    v_add_u32 v14, s50, v11
    v_add_u32 v15, s50, v12
    """)
    def reads(ks):
        for gu in range(2):
            for ft in range(2):
                fr = AF + 16*ks + 4*(gu*2+ft)
                ad = 13 + ft
                off = gu*8192 + ks*4096
                A(f"ds_read_b64_tr_b16 {v(fr,2)}, v{ad} offset:{off}")
                A(f"ds_read_b64_tr_b16 {v(fr+2,2)}, v{ad} offset:{off+1024}")
        for mt in range(2):
            A(f"ds_read_b128 {v(BF+8*ks+4*mt,4)}, v15 offset:{mt*2048 + ks*1024}")
    reads(0)
    reads(1)
    lab = A.newlabel(f"{name}_ni")
    A(f"""s_cmp_ge_u32 s52, 14
    s_cbranch_scc1 {lab}""")
    issue("s51")
    A.label(lab)
    for ks in range(2):
        A(f"s_waitcnt lgkmcnt({10 if ks == 0 else 0})")
        for gu in range(2):
            for ft in range(2):
                for mt in range(2):
                    A(f"v_mfma_f32_32x32x16_bf16 {v(acc(gu,ft,mt),16)}, {v(AF+16*ks+4*(gu*2+ft),4)}, {v(BF+8*ks+4*mt,4)}, {v(acc(gu,ft,mt),16)}")
    A(f"""
    s_add_u32 s50, s50, {STG}
    s_cmp_ge_u32 s50, {3*STG}
    s_cselect_b32 s50, 0, s50
    s_add_u32 s51, s51, {STG}
    s_cmp_ge_u32 s51, {3*STG}
    s_cselect_b32 s51, 0, s51
    s_add_u32 s52, s52, 1
    s_cmp_lt_u32 s52, 16
    s_cbranch_scc1 {name}_loop
    """)
    A.nop(16)
    c0 = -2.0 * math.log2(math.e) * math.sqrt(2.0 / math.pi)
    c1 = c0 * 0.044715
    A(f"""
    s_mov_b32 s46, {f2u(c0)}
    s_mov_b32 s47, {f2u(c1)}
    s_lshl_b32 s48, s38, 2
    s_lshl_b32 s49, s36, 1
    s_add_u32 s48, s48, s49
    s_mul_i32 s48, s48, {144*1024}
    s_lshl_b32 s49, s39, 3
    s_lshl_b32 s53, s37, 2
    s_add_u32 s49, s49, s53
    s_add_u32 s49, s49, 32
    s_lshl_b32 s49, s49, 10
    s_add_u32 s48, s48, s49
    v_mov_b32 v13, s46
    """)
    for mt in range(2):
        for ft in range(2):
            G, U = acc(0, ft, mt), acc(1, ft, mt)
            for i0 in range(0, 16, 4):
                for i in range(i0, i0+4):
                    A(f"v_mul_f32 v{AF+i%4}, v{G+i}, v{G+i}")
                for i in range(i0, i0+4):
                    A(f"v_fma_f32 v{AF+i%4}, v{AF+i%4}, s47, v13")
                for i in range(i0, i0+4):
                    A(f"v_mul_f32 v{AF+i%4}, v{AF+i%4}, v{G+i}")
                for i in range(i0, i0+4):
                    A(f"v_exp_f32 v{AF+i%4}, v{AF+i%4}")
                for i in range(i0, i0+4):
                    A(f"v_mul_f32 v{G+i}, v{G+i}, v{U+i}")
                for i in range(i0, i0+4):
                    A(f"v_add_f32 v{AF+i%4}, 1.0, v{AF+i%4}")
                for i in range(i0, i0+4):
                    A(f"v_rcp_f32 v{AF+i%4}, v{AF+i%4}")
                A("s_nop 0")
                for i in range(i0, i0+4):
                    A(f"v_mul_f32 v{G+i}, v{G+i}, v{AF+i%4}")
            for i in range(8):
                A(f"v_cvt_pk_bf16_f32 v{U+i}, v{G+2*i}, v{G+2*i+1}")
            A(f"s_add_u32 s49, s48, {mt*144*1024 + ft*2048}")
            A(f"buffer_store_dwordx4 {v(U,4)}, v6, s[28:31], s49 offen")
            A(f"buffer_store_dwordx4 {v(U+4,4)}, v6, s[28:31], s49 offen offset:1024")
    if standalone:
        A.label(f"{name}_end")
        A("s_endpgm")
    return A.text(), kernel_desc(name, NV, 64)
```

```python
import sys
from asmlib import *
import k1, katt, kup, kfin
HEADER = open("parallel_sum__grouped_kv_mqa__glu_gated_geglu__prompt.s.ref").read().split("; Override launch")[0]
def build(kernels, launches, path):
    out = HEADER
    for (k, g, b, lds) in launches:
        out += f"; @launch kernel={k} grid=({g},1,1) block=({b},1,1) lds={lds}\n"
    out += '.amdgcn_target "amdgcn-amd-amdhsa--gfx950"\n.text\n'
    for (t, d) in kernels: out += t
    out += '.section .rodata,"a"\n'
    for (t, d) in kernels: out += ".p2align 6\n" + d
    open(path, "w").write(out)
if __name__ == "__main__":
    build([k1.gen_k1(), katt.gen_att(stamps=('stamps' in sys.argv)), kup.gen_up(), kfin.gen_fin()],
          [("ln_kv_kernel", 64, 256, 61440), ("att_kernel", 256, 256, 81920), ("up_kernel", 224, 256, 73728), ("fin_kernel", 256, 256, 65536)],
          "out.s")
```

```python
import re
def v(i, n=1):
    return f"v{i}" if n == 1 else f"v[{i}:{i+n-1}]"
def a(i, n=1):
    return f"a{i}" if n == 1 else f"a[{i}:{i+n-1}]"
def s(i, n=1):
    return f"s{i}" if n == 1 else f"s[{i}:{i+n-1}]"

class Asm:
    def __init__(self):
        self.lines = []
        self.uid = 0
    def __call__(self, text):
        for ln in text.strip("\n").split("\n"):
            ln = ln.strip()
            if ln:
                self.lines.append("    " + ln)
    def label(self, name):
        self.lines.append(f"{name}:")
    def raw(self, text):
        self.lines.append(text)
    def c(self, text):
        self.lines.append(f"    ; {text}")
    def newlabel(self, prefix="L"):
        self.uid += 1
        return f"{prefix}_{self.uid}"
    def nop(self, n):
        while n > 0:
            k = min(n, 16)
            self(f"s_nop {k-1}")
            n -= k
    stamps = False
    def stamp(self, i):
        if not self.stamps: return
        self(f"s_memtime s[{70+2*i}:{71+2*i}]")
        if i == 0: self("s_memrealtime s[94:95]")
    def stamp_flush(self, kidx, ws_lo, ws_hi, wave_s, lane_v, n, t0=20):
        if not self.stamps: return
        self("s_waitcnt vmcnt(0)")
        self.stamp(n-1)
        self("s_memrealtime s[96:97]")
        self("s_waitcnt lgkmcnt(0)")
        self(f"""s_add_u32 s98, s{ws_lo}, {(200<<20) + (kidx<<20)}
        s_addc_u32 s99, s{ws_hi}, 0
        s_lshl_b32 s92, s2, 3
        s_add_u32 s92, s92, s{wave_s}
        s_lshl_b32 s92, s92, 6
        v_mov_b32 v{t0}, s92
        v_cmp_eq_u32 vcc, 0, v{lane_v}
        s_and_saveexec_b64 s[90:91], vcc""")
        for k in range(n):
            self(f"v_mov_b32 v{t0+1}, s{70+2*k}")
            self(f"global_store_dword v{t0}, v{t0+1}, s[98:99] offset:{4*k}")
        self("s_getreg_b32 s92, hwreg(HW_REG_HW_ID)")
        self("s_getreg_b32 s93, hwreg(HW_REG_XCC_ID)")
        self(f"v_mov_b32 v{t0+1}, s92")
        self(f"global_store_dword v{t0}, v{t0+1}, s[98:99] offset:48")
        self(f"v_mov_b32 v{t0+1}, s93")
        self(f"global_store_dword v{t0}, v{t0+1}, s[98:99] offset:52")
        self(f"v_mov_b32 v{t0+1}, s94")
        self(f"global_store_dword v{t0}, v{t0+1}, s[98:99] offset:56")
        self(f"v_mov_b32 v{t0+1}, s96")
        self(f"global_store_dword v{t0}, v{t0+1}, s[98:99] offset:60")
        self("s_mov_b64 exec, s[90:91]")
    def text(self):
        return "\n".join(self.lines) + "\n"

def kernel_header(name):
    return f""".globl {name}
.p2align 8
.type {name},@function
{name}:
"""
def kernel_desc(name, vgpr, sgpr, accum=None, wg_y=False):
    if accum is None:
        accum = (vgpr + 3) // 4 * 4
    return f""".amdhsa_kernel {name}
  .amdhsa_next_free_vgpr {vgpr}
  .amdhsa_next_free_sgpr {sgpr}
  .amdhsa_accum_offset {accum}
  .amdhsa_group_segment_fixed_size 0
  .amdhsa_kernarg_size 96
  .amdhsa_user_sgpr_count 2
  .amdhsa_user_sgpr_kernarg_segment_ptr 1
  .amdhsa_system_sgpr_workgroup_id_x 1
.end_amdhsa_kernel
"""
def srd(A, sreg, base_lo, base_hi, nbytes):
    A(f"""s_mov_b32 s{sreg}, s{base_lo}
    s_and_b32 s{sreg+1}, s{base_hi}, 0xffff
    s_mov_b32 s{sreg+2}, {nbytes}
    s_mov_b32 s{sreg+3}, 0x00020000""")
def srd_off(A, sreg, base_lo, base_hi, off, nbytes):
    A(f"""s_add_u32 s{sreg}, s{base_lo}, {off}
    s_addc_u32 s{sreg+1}, s{base_hi}, 0
    s_and_b32 s{sreg+1}, s{sreg+1}, 0xffff
    s_mov_b32 s{sreg+2}, {nbytes}
    s_mov_b32 s{sreg+3}, 0x00020000""")

def interleave(A, main_lines, side_groups, start=0, every=None):
    n = len(main_lines); g = len(side_groups)
    if every is None:
        every = max(1, (n - start) // (g + 1)) if g else n
    gi = 0
    for i, ln in enumerate(main_lines):
        A.lines.append(ln)
        if gi < g and i >= start and (i - start) % every == every - 1:
            for x in side_groups[gi]: A(x)
            gi += 1
    while gi < g:
        for x in side_groups[gi]: A(x)
        gi += 1
```

```python
from asmlib import *
import math, struct
def f2u(x): return struct.unpack("<I", struct.pack("<f", x))[0]
WS_XN   = 0
WS_KV   = 2 << 20
WS_KMAX = WS_KV + (128 << 10)
WS_Q    = 3 << 20
WS_CNT  = (2 << 20) + (192 << 10)
WS_AT   = 6 << 20
AT_PITCH = 2304 * 2
WS_BYTES = 268435456

def dpp_sum8(A, r, t):
    for ctrl in ("quad_perm:[1,0,3,2]", "quad_perm:[2,3,0,1]", "row_half_mirror"):
        A("s_nop 1")
        A(f"v_add_f32_dpp v{r}, v{r}, v{r} {ctrl} row_mask:0xf bank_mask:0xf")

def gen_k1(name="ln_qkv_kernel", stamps=False, touch=False, codepf=None):
    A = Asm(); A.stamps = stamps
    A.raw(kernel_header(name).rstrip("\n"))
    XR = 128 << 10
    KVF = 120
    A(f"""
    s_cmp_ge_u32 s2, 256
    s_cbranch_scc1 {name}_end
    """)
    A.stamp(0)
    A(f"""
    s_load_dwordx4 s[4:7], s[0:1], 0       ; x, wq
    s_load_dwordx4 s[8:11], s[0:1], 16
    s_load_dwordx2 s[12:13], s[0:1], 88    ; ws
    v_and_b32 v1, 63, v0                   ; lane
    v_lshrrev_b32 v5, 6, v0                ; wave
    v_and_b32 v2, 31, v0                   ; m
    v_bfe_u32 v3, v0, 5, 1                 ; h
    v_readfirstlane_b32 s3, v5
    s_lshr_b32 s36, s2, 2                  ; rb
    s_and_b32 s37, s2, 3                   ; cg
    v_lshrrev_b32 v4, 3, v1
    v_and_b32 v5, 7, v1                    ; c = l%8
    v_lshlrev_b32 v7, 10, v4
    v_lshl_add_u32 v7, v5, 4, v7
    v_lshlrev_b32 v6, 4, v1                ; lane*16
    s_lshl_b32 s38, s36, 15                ; rb*32*1024
    s_lshl_b32 s39, s3, 13                 ; w*8*1024
    s_add_u32 s38, s38, s39
    s_waitcnt lgkmcnt(0)
    """)
    srd(A, 16, 4, 5, 2048 * 1024)
    for j in range(8):
        A(f"buffer_load_dwordx4 {v(8+4*j,4)}, v7, s[16:19], s38 offen offset:{j*128}")
    srd(A, 28, 6, 7, 512 * 1024)
    A(f"""
    s_cmp_eq_u32 s37, 1
    s_cselect_b32 s20, s10, s8
    s_cselect_b32 s21, s11, s9
    s_and_b32 s21, s21, 0xffff
    s_mov_b32 s22, {512*32}
    s_mov_b32 s23, 0x00020000
    s_lshl_b32 s40, s3, 12
    """)
    for j in range(4):
        A(f"""s_add_u32 m0, s40, {XR + j*1024}
        s_add_u32 s41, s40, {j*1024}
        buffer_load_dwordx4 v6, s[20:23], s41 offen lds""")
    A(f"""
    v_lshrrev_b32 v40, 4, v1               ; r
    v_bfe_u32 v41, v1, 2, 2                ; pos
    v_xor_b32 v41, v41, v40                ; q
    v_lshlrev_b32 v40, 10, v40             ; r*1024
    v_lshl_add_u32 v40, v41, 6, v40
    v_and_b32 v41, 3, v1
    v_lshl_add_u32 v40, v41, 4, v40
    s_lshl_b32 s40, s37, 8                 ; cg*256
    s_lshl_b32 s41, s3, 17                 ; w*128*1024
    s_add_u32 s40, s40, s41
    s_lshl_b32 s41, s3, 15
    s_mov_b32 s42, 0
    """)
    def wdma(n):
        return [f"s_add_u32 m0, s41, {n*1024}", f"s_add_u32 s43, s40, {n*4096}", "buffer_load_dwordx4 v116, s[28:31], s43 offen lds"]
    A("v_mov_b32 v116, v40")
    NUP = 12
    for n in range(NUP):
        for x in wdma(n): A(x)
    if codepf:
        A(f"""
        s_getpc_b64 s[48:49]
        {name}_pc:
        s_add_u32 s48, s48, {codepf}-{name}_pc
        s_addc_u32 s49, s49, 0
        s_lshr_b32 s50, s2, 3                  ; j
        s_lshl_b32 s50, s50, 2
        s_add_u32 s50, s50, s3                 ; g = 0..127
        s_lshl_b32 s50, s50, 9
        s_cmp_ge_u32 s50, {codepf}_code_end-{codepf}
        s_cbranch_scc1 {name}_nopf
        v_lshlrev_b32 v117, 7, v1
        v_add_u32 v117, s50, v117
        s_mov_b64 s[52:53], exec
        s_mov_b64 exec, 15
        global_load_dword v119, v117, s[48:49]
        s_mov_b64 exec, s[52:53]
        {name}_nopf:
        """)
    if touch:
        A(f"""
        s_load_dwordx4 s[48:51], s[0:1], 48
        v_mul_u32_u24 v117, 37, v1
        v_lshrrev_b32 v117, 9, v117            ; l/14
        v_mul_u32_u24 v118, 14, v117
        v_sub_u32 v118, v1, v118               ; l%14
        v_mul_u32_u24 v117, 3584, v117
        v_lshl_add_u32 v117, v118, 7, v117
        s_lshr_b32 s52, s2, 3
        s_lshl_b32 s52, s52, 2
        s_add_u32 s52, s52, s3                 ; g = j*4 + w
        s_mul_i32 s52, s52, {4*3584}
        s_bfe_u32 s53, s2, 0x10002             ; x/4
        s_mul_i32 s53, s53, 1792
        s_add_u32 s52, s52, s53
        s_waitcnt lgkmcnt(0)
        s_and_b32 s49, s49, 0xffff
        s_mov_b32 s56, s50
        s_and_b32 s57, s51, 0xffff
        s_mov_b32 s50, {512*3584}
        s_mov_b32 s51, 0x00020000
        s_mov_b32 s58, {512*3584}
        s_mov_b32 s59, 0x00020000
        buffer_load_dword v119, v117, s[48:51], s52 offen
        buffer_load_dword v119, v117, s[56:59], s52 offen
        """)
    A.stamp(1)
    srd_off(A, 16, 12, 13, WS_XN, 2048 * 1024)
    srd_off(A, 24, 12, 13, WS_KV, (128 << 10) + 256)
    srd_off(A, 32, 12, 13, WS_Q, 2048 * 1024)
    A(f"""
    v_bfe_u32 v41, v1, 2, 2                ; r
    v_lshl_add_u32 v41, v3, 3, v41         ; 8h+r
    v_lshlrev_b32 v41, 5, v41
    v_and_b32 v42, 3, v1
    v_lshl_add_u32 v41, v42, 3, v41
    s_lshl_b32 s44, s3, 12
    s_add_u32 s44, s44, {XR}
    v_add_u32 v41, s44, v41
    v_mov_b32 v104, 0x3f803f80
    v_mov_b32 v105, 0
    v_mov_b32 v106, 0
    s_waitcnt vmcnt({(14 if touch else 12) + (0)})
    """)
    A.stamp(2)
    for st in range(8):
        A(f"ds_read_b64_tr_b16 {v(KVF+4*st,2)}, v41 offset:{st*512}")
        A(f"ds_read_b64_tr_b16 {v(KVF+4*st+2,2)}, v41 offset:{st*512+128}")
    Amain = A
    A = Asm()
    for i in range(32):
        A(f"v_dot2c_f32_bf16 v{105 + (i%2)}, v{8+i}, v104")
    A("s_nop 3")
    A("v_add_f32 v105, v105, v106")
    dpp_sum8(A, 105, 106)
    A(f"""
    v_mul_f32 v107, 0x3b000000, v105       ; mean
    v_cvt_pk_bf16_f32 v108, v107, v107
    v_lshlrev_b32 v108, 16, v108           ; m_b
    v_sub_f32 v110, 0, v108
    v_sub_f32 v107, v107, v108
    v_mov_b32 v112, 0
    v_mov_b32 v113, 0
    """)
    for i in range(32):
        A(f"v_lshlrev_b32 v{40+2*i}, 16, v{8+i}")
        A(f"v_and_b32 v{41+2*i}, 0xffff0000, v{8+i}")
    for i in range(32):
        A(f"v_pk_add_f32 {v(40+2*i,2)}, {v(40+2*i,2)}, v[110:111] op_sel_hi:[1,0]")
    for i in range(32):
        A(f"v_pk_fma_f32 v[112:113], {v(40+2*i,2)}, {v(40+2*i,2)}, v[112:113]")
    A("v_add_f32 v112, v112, v113")
    dpp_sum8(A, 112, 113)
    A(f"""
    v_mul_f32 v112, 0x3b000000, v112
    v_fma_f32 v112, -v107, v107, v112
    v_max_f32 v112, 0, v112
    v_cvt_pk_bf16_f32 v112, v112, v112
    v_lshlrev_b32 v112, 16, v112           ; var_b
    v_add_f32 v112, 0x3727c5ac, v112       ; + 1e-5
    v_cvt_pk_bf16_f32 v112, v112, v112
    v_lshlrev_b32 v112, 16, v112
    v_sqrt_f32 v112, v112
    s_nop 0
    v_cvt_pk_bf16_f32 v112, v112, v112
    v_lshlrev_b32 v112, 16, v112           ; s (bf16)
    v_rcp_f32 v110, v112
    """)
    for i in range(32):
        A(f"v_cvt_pk_bf16_f32 v{8+i}, v{40+2*i}, v{41+2*i}")
    for i in range(32):
        A(f"v_lshlrev_b32 v{40+2*i}, 16, v{8+i}")
        A(f"v_and_b32 v{41+2*i}, 0xffff0000, v{8+i}")
    for i in range(32):
        A(f"v_pk_mul_f32 {v(40+2*i,2)}, {v(40+2*i,2)}, v[110:111] op_sel_hi:[1,0]")
    for i in range(32):
        A(f"v_cvt_pk_bf16_f32 v{8+i}, v{40+2*i}, v{41+2*i}")
    ln_lines = A.lines
    A = Amain
    interleave(A, ln_lines, [wdma(n) for n in range(NUP, 32)])
    A(f"""
    s_lshl_b32 s40, s3, 3
    v_add_u32 v4, s40, v4                  ; m = 8w + l/8
    v_xor_b32 v4, v4, v5                   ; m ^ c
    v_lshlrev_b32 v4, 4, v4
    v_lshrrev_b32 v7, 1, v5                ; c/2
    v_lshl_add_u32 v4, v7, 10, v4
    v_and_b32 v7, 1, v5
    v_lshl_add_u32 v4, v7, 9, v4
    v_add_u32 v4, {XR}, v4
    s_waitcnt lgkmcnt(0)
    s_barrier
    """)
    for j in range(8):
        A(f"ds_write_b128 v4, {v(8+4*j,4)} offset:{j*4096}")
    A.stamp(3)
    A(f"""
    v_xor_b32 v7, v2, v3                   ; m ^ h
    v_lshlrev_b32 v7, 4, v7
    v_lshl_add_u32 v7, v3, 9, v7
    v_add_u32 v56, {XR}, v7                ; s%4==0
    v_xor_b32 v57, 32, v56                 ; ^ (2<<4)
    v_xor_b32 v58, 64, v56
    v_xor_b32 v59, 96, v56
    ; A frag: k*256 + (w ^ r)*64 + (g%2)*32 + c4*8 ; k = 8h + r
    v_bfe_u32 v60, v1, 2, 2                ; r
    v_lshl_add_u32 v61, v3, 3, v60
    v_lshlrev_b32 v61, 8, v61
    v_xor_b32 v60, s3, v60
    v_lshl_add_u32 v61, v60, 6, v61
    v_bfe_u32 v60, v1, 4, 1
    v_lshl_add_u32 v61, v60, 5, v61
    v_and_b32 v60, 3, v1
    v_lshl_add_u32 v61, v60, 3, v61
    v_add_u32 v62, 65536, v61
    s_waitcnt vmcnt(0) lgkmcnt(0)
    s_barrier
    """)
    A.stamp(4)
    AFq, BFq, QD = 64, 80, 96
    def rd(st):
        a_ = AFq + 4*(st % 4); b_ = BFq + 4*(st % 4)
        ad = 61 if st < 16 else 62
        off = (st % 16) * 4096
        A(f"ds_read_b64_tr_b16 {v(a_,2)}, v{ad} offset:{off}")
        A(f"ds_read_b64_tr_b16 {v(a_+2,2)}, v{ad} offset:{off+1024}")
        A(f"ds_read_b128 {v(b_,4)}, v{56 + st%4} offset:{st*1024}")
    rd(0); rd(1); rd(2)
    for st in range(32):
        if st + 3 < 32:
            rd(st+3)
            A("s_waitcnt lgkmcnt(9)")
        else:
            A(f"s_waitcnt lgkmcnt({3*(31-st)})")
        c_ = "0" if st == 0 else v(QD,16)
        A(f"v_mfma_f32_32x32x16_bf16 {v(QD,16)}, {v(AFq+4*(st%4),4)}, {v(BFq+4*(st%4),4)}, {c_}")
    A(f"s_lshl_b32 s40, s3, 13")
    for q4 in range(4):
        A(f"v_add_u32 v{56+q4}, s40, v{56+q4}")
    for st in range(8):
        A(f"ds_read_b128 {v(8+4*st,4)}, v{56 + st%4} offset:{st*1024}")
    cq = 0.25 * math.log2(math.e)
    A(f"s_mov_b32 s41, {f2u(cq)}")
    A("s_nop 7")
    for i in range(16):
        A(f"v_mul_f32 v{QD+i}, s41, v{QD+i}")
    for i in range(8):
        A(f"v_cvt_pk_bf16_f32 v{QD+i}, v{QD+2*i}, v{QD+2*i+1}")
    A(f"""
    s_lshl_b32 s40, s36, 15
    s_lshl_b32 s41, s37, 13
    s_add_u32 s40, s40, s41
    s_lshl_b32 s41, s3, 11                 ; w*2 heads
    s_add_u32 s40, s40, s41
    buffer_store_dwordx4 {v(QD,4)}, v6, s[32:35], s40 offen
    buffer_store_dwordx4 {v(QD+4,4)}, v6, s[32:35], s40 offen offset:1024
    s_waitcnt lgkmcnt(0)
    """)
    A.stamp_flush(0, 12, 13, 3, 1, 6, t0=152)
    A(f"""
    s_cmp_eq_u32 s37, 2
    s_cbranch_scc1 {name}_xnstore
    s_cmp_eq_u32 s37, 3
    s_cbranch_scc1 {name}_zero
    s_cmp_eq_u32 s37, 1
    s_cbranch_scc1 {name}_vmf
    """)
    KD = 40
    for st in range(8):
        c1 = "0" if st == 0 else v(KD,16)
        A(f"v_mfma_f32_32x32x16_bf16 {v(KD,16)}, {v(KVF+4*st,4)}, {v(8+4*st,4)}, {c1}")
    A(f"s_branch {name}_red")
    A.label(f"{name}_vmf")
    for st in range(8):
        c1 = "0" if st == 0 else v(KD,16)
        A(f"v_mfma_f32_32x32x16_bf16 {v(KD,16)}, {v(8+4*st,4)}, {v(KVF+4*st,4)}, {c1}")
    A.label(f"{name}_red")
    A(f"""
    s_barrier
    s_lshl_b32 s40, s3, 12
    v_add_u32 v7, s40, v6
    s_nop 7
    s_nop 7
    ds_write_b128 v7, {v(KD,4)} offset:0
    ds_write_b128 v7, {v(KD+4,4)} offset:1024
    ds_write_b128 v7, {v(KD+8,4)} offset:2048
    ds_write_b128 v7, {v(KD+12,4)} offset:3072
    s_waitcnt lgkmcnt(0)
    s_barrier
    s_add_u32 s40, s37, 1
    s_cmp_ge_u32 s3, s40
    s_cbranch_scc1 {name}_end
    s_lshl_b32 s40, s3, 11
    v_add_u32 v7, s40, v6
    """)
    for ww in range(4):
        A(f"ds_read_b128 {v(40+8*ww,4)}, v7 offset:{ww*4096}")
        A(f"ds_read_b128 {v(44+8*ww,4)}, v7 offset:{ww*4096 + 1024}")
    A("s_waitcnt lgkmcnt(0)")
    for i in range(8):
        A(f"v_add_f32 v{40+i}, v{40+i}, v{48+i}")
        A(f"v_add_f32 v{56+i}, v{56+i}, v{64+i}")
    for i in range(8):
        A(f"v_add_f32 v{40+i}, v{40+i}, v{56+i}")
    for i in range(4):
        A(f"v_cvt_pk_bf16_f32 v{72+i}, v{40+2*i}, v{41+2*i}")
    A(f"""
    s_lshl_b32 s41, s36, 11                ; rb*2048
    s_cmp_lg_u32 s37, 0
    s_cbranch_scc1 {name}_vstore
    buffer_store_dwordx4 v[72:75], v6, s[24:27], s41 offen
    v_mul_f32 v77, v40, v40
    """)
    for i in range(1, 8):
        A(f"v_fmac_f32 v77, v{40+i}, v{40+i}")
    A(f"""
    v_mov_b32 v78, v77
    s_nop 1
    v_permlane32_swap_b32 v77, v78
    v_add_f32 v77, v77, v78
    s_nop 1
    v_max_f32_dpp v77, v77, v77 row_shr:1 row_mask:0xf bank_mask:0xf
    s_nop 1
    v_max_f32_dpp v77, v77, v77 row_shr:2 row_mask:0xf bank_mask:0xf
    s_nop 1
    v_max_f32_dpp v77, v77, v77 row_shr:4 row_mask:0xf bank_mask:0xf
    s_nop 1
    v_max_f32_dpp v77, v77, v77 row_shr:8 row_mask:0xf bank_mask:0xf
    s_nop 1
    v_readlane_b32 s42, v77, 15
    v_readlane_b32 s43, v77, 31
    s_nop 1
    v_mov_b32 v78, s42
    v_max_f32 v78, s43, v78
    s_lshl_b32 s44, s36, 2
    s_add_u32 s44, s44, {128<<10}
    v_mov_b32 v79, 0
    v_cmp_eq_u32 vcc, 0, v1
    s_and_saveexec_b64 s[46:47], vcc
    buffer_store_dword v78, v79, s[24:27], s44 offen
    s_endpgm
    """)
    A.label(f"{name}_vstore")
    A(f"""
    s_lshl_b32 s42, s3, 9
    s_add_u32 s42, s42, s41
    s_add_u32 s42, s42, 1024
    v_lshlrev_b32 v76, 4, v2
    v_lshl_add_u32 v76, v3, 8, v76
    v_cmp_gt_u32 vcc, 16, v2
    s_and_saveexec_b64 s[46:47], vcc
    buffer_store_dwordx4 v[72:75], v76, s[24:27], s42 offen
    s_endpgm
    """)
    A.label(f"{name}_zero")
    A(f"""
    s_lshl_b32 s40, s36, 8
    s_add_u32 s40, s40, {WS_CNT}
    v_mov_b32 v7, s40
    v_mov_b32 v8, 0
    s_mov_b64 exec, 1
    global_store_dword v7, v8, s[12:13]
    s_endpgm
    """)
    A.label(f"{name}_xnstore")
    A(f"""
    s_lshl_b32 s40, s36, 15
    s_lshl_b32 s41, s3, 13
    s_add_u32 s40, s40, s41
    s_add_u32 s41, s40, 4096
    """)
    for st in range(8):
        A(f"buffer_store_dwordx4 {v(8+4*st,4)}, v6, s[16:19], s{40 if st < 4 else 41} offen offset:{(st%4)*1024}")
    A.label(f"{name}_end")
    A("s_endpgm")
    return A.text(), kernel_desc(name, 160, 100)
```

```python
from asmlib import *
from k1 import *
ACC = 16
AF = 144
BF = 176
DBF = 80
XR_ = 192
TD = 200
TA_, TB_ = 201, 202
NV = 204
STG = 24576
RING = 4
def acc(gu, ft, mt): return ACC + 16 * ((gu * 2 + ft) * 2 + mt)
CNT_H, CNT_O = WS_CNT, WS_CNT + 16*256

class VM:
    def __init__(self, A): self.A = A; self.order = []
    def op(self, text, tag):
        self.A(text); self.order.append(tag)
    def count_after(self, tags):
        idx = [i for i, t in enumerate(self.order) if t in tags]
        if not idx: return None
        return len(self.order) - 1 - max(idx)
    def wait(self, tags, extra=""):
        n = self.count_after(tags)
        assert n is not None, tags
        assert n <= 63
        self.A(f"s_waitcnt vmcnt({n}){extra}")
    def reset(self): self.order = []

def poll(A, name, cnt_off_s, target):
    lab = A.newlabel(name + "_poll"); done = A.newlabel(name + "_polled")
    A(f"""
    s_cmp_lg_u32 s3, 0
    s_cbranch_scc1 {done}
    v_mov_b32 v4, {cnt_off_s}
    """)
    A.label(lab)
    A(f"""
    global_load_dword v5, v4, s[12:13] sc1
    s_waitcnt vmcnt(0)
    v_readfirstlane_b32 s46, v5
    s_cmp_ge_u32 s46, {target}
    s_cbranch_scc1 {done}
    s_sleep 4
    s_branch {lab}
    """)
    A.label(done)
    A("s_barrier")

def signal(A, cnt_off_s):
    done = A.newlabel("sig")
    A(f"""
    s_waitcnt vmcnt(0)
    s_barrier
    s_cmp_lg_u32 s3, 0
    s_cbranch_scc1 {done}
    v_mov_b32 v4, {cnt_off_s}
    v_mov_b32 v5, 1
    s_mov_b64 s[46:47], exec
    s_mov_b64 exec, 1
    global_atomic_add v4, v5, s[12:13] sc1
    s_mov_b64 exec, s[46:47]
    """)
    A.label(done)

def gen_gemm(name="gm", stamps=False, prio=2, lowprio=0, stsc=" sc1", ldsc="", touch=True):
    A = Asm(); A.stamps = stamps
    V = VM(A)
    A.stamp(0)
    A(f"""
    s_setprio {lowprio}
    s_load_dwordx4 s[4:7], s[0:1], 48
    s_load_dwordx4 s[8:11], s[0:1], 64
    s_load_dwordx2 s[12:13], s[0:1], 88    ; ws
    s_load_dwordx2 s[56:57], s[0:1], 0     ; x
    s_load_dwordx2 s[58:59], s[0:1], 32    ; wo
    v_and_b32 v1, 63, v0                   ; lane
    v_lshrrev_b32 v5, 6, v0                ; wave
    v_and_b32 v2, 31, v0                   ; m
    v_bfe_u32 v3, v0, 5, 1                 ; h
    v_readfirstlane_b32 s3, v5
    v_lshlrev_b32 v6, 4, v1                ; lane*16
    v_lshlrev_b32 v{TB_}, 7, v1
    v_lshlrev_b32 v{TB_+1}, 10, v1
    s_and_b32 s61, s2, 31
    s_lshr_b32 s60, s2, 5                  ; nb
    s_waitcnt lgkmcnt(0)
    """)
    srd_off(A, 28, 12, 13, WS_AT, 2048 * AT_PITCH)
    srd(A, 64, 8, 9, 1792 * 1024)
    srd(A, 32, 58, 59, 512 * 1024)
    A(f"""
    s_cmp_ge_u32 s2, 224
    s_cbranch_scc1 {name}_down
    s_and_b32 s36, s2, 7
    s_lshr_b32 s37, s2, 3
    s_and_b32 s38, s36, 3
    s_lshl_b32 s38, s38, 2
    s_and_b32 s39, s37, 3
    s_add_u32 s38, s38, s39                ; mb
    s_lshr_b32 s39, s36, 2
    s_mul_i32 s39, s39, 7
    s_lshr_b32 s37, s37, 2
    s_add_u32 s39, s39, s37                ; fb
    s_and_b32 s36, s3, 1                   ; wm
    s_lshr_b32 s37, s3, 1                  ; wf
    """)
    srd(A, 16, 4, 5, 512 * 3584)
    srd(A, 20, 6, 7, 512 * 3584)
    srd_off(A, 24, 12, 13, WS_XN, 2048 * 1024)
    A(f"""
    v_lshrrev_b32 v7, 4, v1                ; r
    v_bfe_u32 v8, v1, 2, 2                 ; pos
    v_xor_b32 v8, v8, v7                   ; q
    s_mov_b32 s40, 3584
    v_mul_lo_u32 v7, v7, s40               ; r*3584
    v_lshl_add_u32 v7, v8, 6, v7
    v_and_b32 v8, 3, v1
    v_lshl_add_u32 v7, v8, 4, v7
    s_lshl_b32 s41, s38, 2
    s_add_u32 s41, s41, s3
    s_lshl_b32 s41, s41, 15
    s_mov_b32 s62, s41
    s_mul_i32 s42, s3, {8*3584}
    s_lshl_b32 s43, s39, 8
    s_add_u32 s42, s42, s43
    s_lshl_b32 s44, s3, 11
    s_add_u32 s45, s44, 8192
    """)
    def issue_groups(slot, st):
        t = ("S", st)
        return [
          ([f"s_add_u32 s46, s44, {slot}", "s_mov_b32 m0, s46", f"s_add_u32 s47, s45, {slot}"], "buffer_load_dwordx4 v6, s[24:27], s41 offen lds", t),
          (["s_add_u32 m0, s46, 1024", "s_add_u32 s48, s41, 1024"], "buffer_load_dwordx4 v6, s[24:27], s48 offen lds", t),
          (["s_mov_b32 m0, s47", f"s_add_u32 s48, s42, {4*3584}"], "buffer_load_dwordx4 v7, s[16:19], s42 offen lds", t),
          (["s_add_u32 m0, s47, 1024", "s_add_u32 s41, s41, 2048"], "buffer_load_dwordx4 v7, s[16:19], s48 offen lds", t),
          (["s_add_u32 m0, s47, 8192", "s_nop 0"], "buffer_load_dwordx4 v7, s[20:23], s42 offen lds", t),
          (["s_add_u32 m0, s47, 9216", f"s_add_u32 s42, s42, {32*3584}"], "buffer_load_dwordx4 v7, s[20:23], s48 offen lds", t),
        ]
    def emitg(g):
        for x in g[0]: A(x)
        V.op(g[1], g[2])
    for sl in range(3):
        for g in issue_groups(sl*STG, sl): emitg(g)
    A(f"""
    v_bfe_u32 v8, v1, 2, 2                 ; r
    v_lshl_add_u32 v9, v3, 3, v8           ; 8h + r
    v_lshlrev_b32 v9, 8, v9
    v_bfe_u32 v10, v1, 4, 1
    v_lshl_add_u32 v9, v10, 5, v9
    v_and_b32 v10, 3, v1
    v_lshl_add_u32 v9, v10, 3, v9
    v_add_u32 v9, 8192, v9
    s_lshl_b32 s46, s37, 1                 ; 2wf
    v_xor_b32 v10, s46, v8                 ; q0^r
    v_xor_b32 v11, 1, v10                  ; q1^r
    v_lshl_add_u32 v10, v10, 6, v9
    v_lshl_add_u32 v11, v11, 6, v9
    s_lshl_b32 s46, s36, 12
    v_add_u32 v12, s46, v6                 ; B addr
    """)
    def reads(ks, slot):
        L = []
        for mt in range(2):
            L.append(f"ds_read_b128 {v(BF+8*ks+4*mt,4)}, v12 offset:{slot*STG + mt*2048 + ks*1024}")
        for gu in range(2):
            for ft in range(2):
                fr = AF + 16*ks + 4*(gu*2+ft)
                off = slot*STG + gu*8192 + ks*4096
                L.append(f"ds_read_b64_tr_b16 {v(fr,2)}, v{10+ft} offset:{off}")
                L.append(f"ds_read_b64_tr_b16 {v(fr+2,2)}, v{10+ft} offset:{off+1024}")
        return L
    def mf(ks, first):
        return [f"v_mfma_f32_32x32x16_bf16 {v(acc(gu,ft,mt),16)}, {v(AF+16*ks+4*(gu*2+ft),4)}, {v(BF+8*ks+4*mt,4)}, {'0' if first else v(acc(gu,ft,mt),16)}"
                for gu in range(2) for ft in range(2) for mt in range(2)]
    def touch_wd():
        A(f"""s_lshl_b32 s53, s60, 7
        s_mul_i32 s54, s3, {448*1024}
        s_add_u32 s54, s54, s53""")
        for j in range(7):
            A(f"s_add_u32 s48, s54, {j*65536}")
            V.op(f"buffer_load_dword v{TD}, v{TB_+1}, s[64:67], s48 offen", "T")
        A(f"""s_lshl_b32 s54, s3, 17
        s_add_u32 s54, s54, s53""")
        for j in range(2):
            A(f"s_add_u32 s48, s54, {j*65536}")
            V.op(f"buffer_load_dword v{TD}, v{TB_+1}, s[32:35], s48 offen", "T")
    V.wait([("S", 0)])
    A("s_barrier")
    for x in reads(0, 0): A(x)
    A.stamp(1)
    for st in range(16):
        slot = st % 3
        A("s_waitcnt lgkmcnt(0)")
        R1 = reads(1, slot); m0 = mf(0, st == 0)
        ri = 0
        for i in range(8):
            A(m0[i])
            for _ in range(2 if i < 2 else 1):
                if ri < len(R1): A(R1[ri]); ri += 1
        if st < 15:
            V.wait([("S", st+1)], " lgkmcnt(0)")
            A("s_barrier")
        else:
            A("s_waitcnt lgkmcnt(0)")
        G = issue_groups(slot*STG, st+3) if st + 3 < 16 else []
        m1 = mf(1, False); R0 = reads(0, (st+1) % 3) if st < 15 else []
        ri = 0
        for i in range(8):
            A(m1[i])
            for _ in range(2 if i < 2 else 1):
                if ri < len(R0): A(R0[ri]); ri += 1
            if i < len(G): emitg(G[i])
    A(f"s_setprio {prio}")
    A.nop(16)
    A.stamp(2)
    c0 = -2.0 * math.log2(math.e) * math.sqrt(2.0 / math.pi)
    c1 = c0 * 0.044715
    A(f"""
    s_lshl_b32 s48, s38, 2
    s_lshl_b32 s49, s36, 1
    s_add_u32 s48, s48, s49
    s_mul_i32 s48, s48, {144*1024}
    s_lshl_b32 s49, s39, 3
    s_lshl_b32 s53, s37, 2
    s_add_u32 s49, s49, s53
    s_add_u32 s49, s49, 32
    s_lshl_b32 s49, s49, 10
    s_add_u32 s48, s48, s49
    v_mov_b32 v12, {f2u(c0)}
    v_mov_b32 v14, {f2u(c1)}
    v_mov_b32 v10, 1.0
    """)
    T = AF
    for mt in range(2):
        for ft in range(2):
            G_, U = acc(0, ft, mt), acc(1, ft, mt)
            for i0 in range(0, 16, 8):
                R = range(0, 8, 2)
                for i in R: A(f"v_pk_mul_f32 {v(T+i,2)}, {v(G_+i0+i,2)}, {v(G_+i0+i,2)}")
                for i in R: A(f"v_pk_fma_f32 {v(T+i,2)}, {v(T+i,2)}, v[14:15], v[12:13] op_sel_hi:[1,0,0]")
                for i in R: A(f"v_pk_mul_f32 {v(T+i,2)}, {v(T+i,2)}, {v(G_+i0+i,2)}")
                for i in range(8): A(f"v_exp_f32 v{T+i}, v{T+i}")
                for i in R: A(f"v_pk_mul_f32 {v(G_+i0+i,2)}, {v(G_+i0+i,2)}, {v(U+i0+i,2)}")
                for i in R: A(f"v_pk_add_f32 {v(T+i,2)}, {v(T+i,2)}, v[10:11] op_sel_hi:[1,0]")
                for i in range(8): A(f"v_rcp_f32 v{T+i}, v{T+i}")
                A("s_nop 0")
                for i in R: A(f"v_pk_mul_f32 {v(G_+i0+i,2)}, {v(G_+i0+i,2)}, {v(T+i,2)}")
            for i in range(8):
                A(f"v_cvt_pk_bf16_f32 v{U+i}, v{G_+2*i}, v{G_+2*i+1}")
    A(f"s_setprio {lowprio}")
    for mt in range(2):
        for ft in range(2):
            U = acc(1, ft, mt)
            A(f"s_add_u32 s49, s48, {mt*144*1024 + ft*2048}")
            A(f"buffer_store_dwordx4 {v(U,4)}, v6, s[28:31], s49 offen{stsc}")
            A(f"buffer_store_dwordx4 {v(U+4,4)}, v6, s[28:31], s49 offen offset:1024{stsc}")
    A("s_lshl_b32 s49, s38, 8")
    A(f"s_add_u32 s49, s49, {CNT_H}")
    signal(A, "s49")
    A.stamp(3)
    A(f"s_branch {name}_down2")
    A.label(f"{name}_down")
    V.reset()
    if touch:
        A(f"""
        s_sub_u32 s53, s2, 224
        s_lshr_b32 s53, s53, 3
        s_lshl_b32 s53, s53, 2
        s_add_u32 s53, s53, s3                 ; g = 0..15
        s_mul_i32 s54, s53, {112*1024}
        s_lshl_b32 s55, s53, 15
        """)
        for j in range(14):
            A(f"s_add_u32 s48, s54, {j*8192}")
            A(f"buffer_load_dword v{TD}, v{TB_}, s[64:67], s48 offen")
            A("s_waitcnt vmcnt(3)")
        for j in range(4):
            A(f"s_add_u32 s48, s55, {j*8192}")
            A(f"buffer_load_dword v{TD}, v{TB_}, s[32:35], s48 offen")
    A.label(f"{name}_down2")
    V.reset()
    A(f"""
    s_mov_b32 s37, s61                     ; rb2
    s_mov_b32 s36, s60                     ; nb
    """)
    srd(A, 16, 56, 57, 2048 * 1024)
    srd(A, 20, 10, 11, 2048 * 1024)
    A(f"""
    v_lshrrev_b32 v9, 3, v1
    v_bfe_u32 v10, v1, 2, 1
    v_bfe_u32 v11, v1, 4, 1
    v_xor_b32 v10, v10, v11
    v_lshlrev_b32 v9, 10, v9
    v_lshl_add_u32 v9, v10, 6, v9
    v_and_b32 v10, 3, v1
    v_lshl_add_u32 v9, v10, 4, v9
    s_lshl_b32 s40, s36, 7
    v_add_u32 v9, s40, v9
    s_mul_i32 s41, s3, {448*1024}
    s_mul_i32 s42, s3, {28*1024}
    s_add_u32 s42, s42, {32*1024}
    s_lshl_b32 s43, s37, 1
    s_mul_i32 s43, s43, {144*1024}
    s_add_u32 s42, s42, s43
    s_lshl_b32 s44, s3, 14
    v_bfe_u32 v10, v1, 2, 2                ; r
    v_lshl_add_u32 v11, v3, 2, v10         ; 4h + r
    v_lshlrev_b32 v11, 7, v11
    v_bfe_u32 v12, v1, 4, 1
    v_lshl_add_u32 v11, v12, 5, v11
    v_and_b32 v12, 3, v1
    v_lshl_add_u32 v11, v12, 3, v11
    v_add_u32 v11, s44, v11
    v_lshrrev_b32 v10, 1, v10              ; r>>1
    v_lshl_add_u32 v12, v10, 6, v11        ; nt=0
    v_xor_b32 v10, 1, v10
    v_lshl_add_u32 v13, v10, 6, v11        ; nt=1
    """)
    def issueW(slot, srdW, tag):
        L = []
        for j in range(4):
            L.append(([f"s_add_u32 m0, s44, {slot*4096 + j*1024}", f"s_add_u32 s46, s41, {j*8192}"], f"buffer_load_dwordx4 v9, s[{srdW}:{srdW+3}], s46 offen lds", tag, ["s_add_u32 s41, s41, 32768"] if j == 3 else []))
        return L
    def issueB(slot, tag):
        L = []
        for ks in range(2):
            for mt in range(2):
                L.append(([f"s_add_u32 s46, s42, {mt*144*1024 + ks*1024}"], f"buffer_load_dwordx4 {v(DBF+16*slot+8*ks+4*mt,4)}, v6, s[28:31], s46 offen{ldsc}", tag, ["s_add_u32 s42, s42, 2048"] if (ks, mt) == (1, 1) else []))
        return L
    def emit4(g):
        for x in g[0]: A(x)
        V.op(g[1], g[2])
        for x in g[3]: A(x)
    def touch_at(nlines_instr):
        for rbo in range(2):
            for off in (0, 8192, 16384, 20480):
                A(f"s_add_u32 s46, s42, {rbo*144*1024 + off}")
                V.op(f"buffer_load_dword v{TD}, v{TB_}, s[28:31], s46 offen", "T")
    NH = 14
    for st in range(RING-1):
        for g in issueW(st, 64, ("W", st)): emit4(g)
    A(f"""
    s_and_b32 s47, s3, 1
    s_lshr_b32 s48, s3, 1
    s_lshl_b32 s49, s37, 6
    s_lshl_b32 s53, s47, 5
    s_add_u32 s49, s49, s53
    s_lshl_b32 s49, s49, 10
    s_lshl_b32 s53, s36, 7
    s_add_u32 s49, s49, s53
    s_lshl_b32 s53, s48, 6
    s_add_u32 s49, s49, s53
    v_lshlrev_b32 v14, 10, v2
    v_add_u32 v14, s49, v14
    v_lshl_add_u32 v15, v3, 3, v14
    """)
    for j in range(4):
        V.op(f"buffer_load_dwordx2 {v(XR_+2*j,2)}, v15, s[16:19], 0 offen offset:{16*j}", "x")
    A("s_lshr_b32 s49, s37, 1")
    A("s_lshl_b32 s49, s49, 8")
    A(f"s_add_u32 s49, s49, {CNT_H}")
    poll(A, name, "s49", 14)
    A.stamp(4)
    for st in range(RING-1):
        for g in issueB(st, ("B", st)): emit4(g)
    def wreads(st):
        slot = st % RING; ab = AF + 16*(st % 2); L = []
        for ks in range(2):
            for nt in range(2):
                fr = ab + 8*ks + 4*nt; off = slot*4096 + ks*2048
                L.append(f"ds_read_b64_tr_b16 {v(fr,2)}, v{12+nt} offset:{off}")
                L.append(f"ds_read_b64_tr_b16 {v(fr+2,2)}, v{12+nt} offset:{off+1024}")
        return L
    def dmf(st, first):
        slot = st % RING; ab = AF + 16*(st % 2); L = []
        for ks in range(2):
            for nt in range(2):
                for mt in range(2):
                    D = ACC + 16*(nt*2+mt)
                    c_ = "0" if (first and ks == 0) else v(D,16)
                    L.append(f"v_mfma_f32_32x32x16_bf16 {v(D,16)}, {v(ab+8*ks+4*nt,4)}, {v(DBF+16*slot+8*ks+4*mt,4)}, {c_}")
        return L
    V.wait([("W", 0)])
    for x in wreads(0): A(x)
    for st in range(NH):
        items = [("B", st)] + ([("W", st+1)] if st + 1 < NH else [])
        V.wait(items, " lgkmcnt(0)")
        Rn = wreads(st+1) if st + 1 < NH else []
        Gi = (issueW((st+3) % RING, 64, ("W", st+3)) + issueB((st+3) % RING, ("B", st+3))) if st + 3 < NH else []
        M = dmf(st, st == 0)
        for i in range(8):
            A(M[i])
            if i < len(Rn): A(Rn[i])
            if i < len(Gi): emit4(Gi[i])
    A.stamp(5)
    A(f"""
    s_lshl_b32 s41, s3, 17
    s_lshl_b32 s42, s3, 13
    s_add_u32 s42, s42, s43
    s_waitcnt lgkmcnt(0)
    """)
    for st in range(4):
        for g in issueW(st, 32, ("W2", st)): emit4(g)
    A(f"s_lshl_b32 s49, s37, 8")
    A(f"s_add_u32 s49, s49, {CNT_O}")
    poll(A, name, "s49", 8)
    A.stamp(6)
    for st in range(4):
        for g in issueB(st, ("B2", st)): emit4(g)
    V.wait([("W2", 0)])
    for x in wreads(0): A(x)
    for st in range(4):
        V.wait([("B2", st)] + ([("W2", st+1)] if st < 3 else []), " lgkmcnt(0)")
        Rn = wreads(st+1) if st < 3 else []
        M = dmf(st, False)
        for i in range(8):
            A(M[i])
            if i < len(Rn): A(Rn[i])
    A.nop(16)
    A("s_barrier")
    A("v_add_u32 v7, s44, v6")
    for t in range(4):
        for qd in range(4):
            A(f"ds_write_b128 v7, {v(ACC+16*t+4*qd,4)} offset:{t*4096+qd*1024}")
    A(f"""s_waitcnt lgkmcnt(0)
    s_barrier
    s_lshl_b32 s50, s3, 12
    v_add_u32 v7, s50, v6
    """)
    for ww in range(4):
        for qd in range(4):
            A(f"ds_read_b128 {v(ACC+16*ww+4*qd,4)}, v7 offset:{ww*16384+qd*1024}")
    for j in range(4):
        A(f"v_lshlrev_b32 v{80+4*j}, 16, v{XR_+2*j}")
        A(f"v_and_b32 v{81+4*j}, 0xffff0000, v{XR_+2*j}")
        A(f"v_lshlrev_b32 v{82+4*j}, 16, v{XR_+1+2*j}")
        A(f"v_and_b32 v{83+4*j}, 0xffff0000, v{XR_+1+2*j}")
    A("s_waitcnt lgkmcnt(0)")
    for i in range(0, 16, 2):
        A(f"v_pk_add_f32 {v(ACC+i,2)}, {v(ACC+i,2)}, {v(ACC+16+i,2)}")
        A(f"v_pk_add_f32 {v(ACC+32+i,2)}, {v(ACC+32+i,2)}, {v(ACC+48+i,2)}")
    for i in range(0, 16, 2):
        A(f"v_pk_add_f32 {v(ACC+i,2)}, {v(ACC+i,2)}, {v(80+i,2)}")
    for i in range(0, 16, 2):
        A(f"v_pk_add_f32 {v(ACC+i,2)}, {v(ACC+i,2)}, {v(ACC+32+i,2)}")
    for i in range(8):
        A(f"v_cvt_pk_bf16_f32 v{96+i}, v{ACC+2*i}, v{ACC+2*i+1}")
    A(f"""s_nop 1
    v_permlane32_swap_b32 v96, v98
    v_permlane32_swap_b32 v97, v99
    v_permlane32_swap_b32 v100, v102
    v_permlane32_swap_b32 v101, v103
    v_lshl_add_u32 v15, v3, 4, v14
    buffer_store_dwordx4 v[96:99], v15, s[20:23], 0 offen
    buffer_store_dwordx4 v[100:103], v15, s[20:23], 0 offen offset:32
    """)
    A.stamp_flush(2, 12, 13, 3, 1, 8)
    return A.text()
```

```python
from asmlib import *
import math, struct
from kgemm import VM
def f2u(x): return struct.unpack("<I", struct.pack("<f", x))[0]
WS_XN   = 0
WS_KV   = 2 << 20
WS_KMAX = WS_KV + (128 << 10)
WS_FLG  = 3 << 20
FLG_KVR = WS_FLG + 16384
FLG_KV, FLG_XN, FLG_H, FLG_O = WS_FLG, WS_FLG + 1024, WS_FLG + 4096, WS_FLG + 8192
WS_AT   = 6 << 20
AT_BYTES = 64 * 144 * 1024
SLOT = 16384
STG = 24576
EP = 68

def get_epoch(A, name):
    lab = A.newlabel(name + "_ep")
    A("v_mov_b32 v4, 0")
    A.label(lab)
    A(f"""
    global_load_dwordx2 v[124:125], v4, s[14:15] sc1
    s_waitcnt vmcnt(0)
    v_readfirstlane_b32 s{EP}, v124
    v_readfirstlane_b32 s{EP+1}, v125
    s_or_b32 s46, s{EP}, s{EP+1}
    s_cmp_eq_u32 s46, 0
    s_cbranch_scc1 {lab}
    """)

def poll(A, name, off_s, n, need_epoch=False):
    lab = A.newlabel(name + "_poll"); done = A.newlabel(name + "_polled")
    A(f"""
    s_cmp_lg_u32 s3, 0
    s_cbranch_scc1 {done}
    """)
    if need_epoch: get_epoch(A, name)
    A(f"""
    v_lshlrev_b32 v4, 3, v1
    v_add_u32 v4, {off_s}, v4
    s_mov_b64 s[46:47], exec
    s_mov_b32 exec_lo, {hex(((1 << n) - 1) & 0xffffffff)}
    s_mov_b32 exec_hi, {hex(((1 << n) - 1) >> 32)}
    """)
    A.label(lab)
    A(f"""
    global_load_dwordx2 v[124:125], v4, s[12:13] sc1
    s_waitcnt vmcnt(0)
    v_cmp_ne_u64 vcc, s[{EP}:{EP+1}], v[124:125]
    s_cmp_eq_u64 vcc, 0
    s_cbranch_scc1 {lab}_ok
    s_sleep 2
    s_branch {lab}
    """)
    A.label(lab + "_ok")
    A("s_mov_b64 exec, s[46:47]")
    A.label(done)
    A("s_barrier")

def poll_kv(A, name, off_s):
    lab = A.newlabel(name + "_pollkv"); done = A.newlabel(name + "_polledkv")
    A(f"""
    s_cmp_lg_u32 s3, 0
    s_cbranch_scc1 {done}
    """)
    get_epoch(A, name)
    A(f"""
    v_add_u32 v4, {off_s}, v6
    """)
    A.label(lab)
    A(f"""
    global_load_dwordx4 v[124:127], v4, s[12:13] sc1
    s_waitcnt vmcnt(0)
    v_cmp_ne_u64 vcc, s[{EP}:{EP+1}], v[124:125]
    v_cmp_ne_u64 s[46:47], s[{EP}:{EP+1}], v[126:127]
    s_or_b64 vcc, vcc, s[46:47]
    s_cmp_eq_u64 vcc, 0
    s_cbranch_scc1 {done}
    s_sleep 3
    s_branch {lab}
    """)
    A.label(done)
    A("s_barrier")

def signal(A, name, off_s, need_epoch=False):
    done = A.newlabel(name + "_sig")
    A(f"""
    s_waitcnt vmcnt(0)
    s_barrier
    s_cmp_lg_u32 s3, 0
    s_cbranch_scc1 {done}
    """)
    if need_epoch: get_epoch(A, name)
    A(f"""
    v_mov_b32 v4, {off_s}
    v_mov_b32 v124, s{EP}
    v_mov_b32 v125, s{EP+1}
    s_mov_b64 s[46:47], exec
    s_mov_b64 exec, 1
    global_store_dwordx2 v4, v[124:125], s[12:13] sc1
    s_mov_b64 exec, s[46:47]
    """)
    A.label(done)

def dpp_sum8(A, r):
    for ctrl in ("quad_perm:[1,0,3,2]", "quad_perm:[2,3,0,1]", "row_half_mirror"):
        A("s_nop 1")
        A(f"v_add_f32_dpp v{r}, v{r}, v{r} {ctrl} row_mask:0xf bank_mask:0xf")

def lane_reduce_max(A, vr, tmp_s0, out_s):
    for sh in (1,2,4,8):
        A("s_nop 1")
        A(f"v_max_f32_dpp v{vr}, v{vr}, v{vr} row_shr:{sh} row_mask:0xf bank_mask:0xf")
    A("s_nop 1")
    A(f"""v_readlane_b32 s{tmp_s0}, v{vr}, 15
    v_readlane_b32 s{tmp_s0+1}, v{vr}, 31
    v_readlane_b32 s{tmp_s0+2}, v{vr}, 47
    v_readlane_b32 s{tmp_s0+3}, v{vr}, 63
    s_nop 1
    v_mov_b32 v{vr}, s{tmp_s0}
    v_max_f32 v{vr}, s{tmp_s0+1}, v{vr}
    v_max_f32 v{vr}, s{tmp_s0+2}, v{vr}
    v_max_f32 v{vr}, s{tmp_s0+3}, v{vr}
    s_nop 0
    v_readfirstlane_b32 s{out_s}, v{vr}""")

S0, S1, O, C, P, Q, Kf, Vf = 16, 32, 48, 64, 80, 88, 92, 100
vKc, vKn, vVc, vVn, vKl, vVl = 116, 117, 118, 119, 120, 121

def att_stage(A, i):
    par = i % 2
    Sc, Sn = (S0, S1) if par == 0 else (S1, S0)
    kold, knxt = Kf + 4*par, Kf + 4*(1-par)
    vcur, vprev = Vf + 8*par, Vf + 8*(1-par)
    E = lambda k: A(f"v_exp_f32 v{Sc+k}, v{Sc+k}")
    Cv = lambda k: A(f"v_cvt_pk_bf16_f32 v{P+k}, v{Sc+2*k}, v{Sc+2*k+1}")
    M = lambda D, a_, b_, c_: A(f"v_mfma_f32_32x32x16_bf16 {v(D,16)}, {v(a_,4)}, {v(b_,4)}, {v(c_,16)}")
    E(0); E(1)
    M(O, vprev+4, P+4, O)
    for k in range(2,6): E(k)
    if i == 6:
        A("s_waitcnt vmcnt(0)")
        A("s_barrier")
        A.chunk_issue()
    A("s_waitcnt lgkmcnt(0)")
    M(Sn, knxt, Q, C)
    kt = i + 2
    A(f"ds_read_b128 {v(kold,4)}, v{vKc if kt < 8 else vKn} offset:{(kt % 8)*2048}")
    vt = i + 1
    va = vVc if vt < 8 else vVn
    A("s_mov_b64 exec, s[60:61]")
    A(f"ds_read_b128 {v(vprev,4)}, v{va} offset:{(vt % 8)*2048 + 1024}")
    A(f"ds_read_b128 {v(vprev+4,4)}, v{va} offset:{(vt % 8)*2048 + 1536}")
    A("s_mov_b64 exec, -1")
    E(6); E(7)
    for k in range(4): Cv(k)
    E(8); E(9)
    M(O, vcur, P, O)
    for k in range(10,16): E(k)
    for k in range(4,8): Cv(k)

def gen_mega(name="parallel_sum__grouped_kv_mqa__glu_gated_geglu__prompt_kernel", stamps=False, prio=2, lowprio=0):
    A = Asm(); A.stamps = stamps
    N = "m"
    A.raw(kernel_header(name).rstrip("\n"))
    A(f"""
    s_cmp_ge_u32 s2, 512
    s_cbranch_scc1 {N}_end
    """)
    A.stamp(0)
    A(f"""
    s_load_dwordx4 s[4:7], s[0:1], 0       ; x, wq
    s_load_dwordx4 s[8:11], s[0:1], 16
    s_load_dwordx4 s[12:15], s[0:1], 80
    v_and_b32 v1, 63, v0                   ; lane
    v_lshrrev_b32 v5, 6, v0                ; wave
    v_and_b32 v2, 31, v0                   ; m
    v_bfe_u32 v3, v0, 5, 1                 ; h
    v_readfirstlane_b32 s3, v5
    v_lshlrev_b32 v6, 4, v1                ; lane*16
    s_and_b32 s37, s2, 31                  ; rb2
    s_lshr_b32 s36, s2, 5                  ; hg
    v_lshrrev_b32 v4, 3, v1
    v_and_b32 v5, 7, v1                    ; c = l%8
    v_lshlrev_b32 v7, 10, v4
    v_lshl_add_u32 v7, v5, 4, v7
    s_lshl_b32 s38, s37, 16                ; rb2*64*1024
    s_lshl_b32 s39, s3, 13                 ; w*8*1024
    s_add_u32 s38, s38, s39
    s_waitcnt lgkmcnt(0)
    s_mov_b32 s46, s12
    s_mov_b32 s47, s13
    s_mov_b32 s12, s14
    s_mov_b32 s13, s15                     ; s[12:13] = ws
    s_mov_b32 s14, s46
    s_mov_b32 s15, s47                     ; s[14:15] = dbg
    s_cmp_gt_u32 s2, 255
    s_cbranch_scc1 {N}_gmain
    """)
    A("s_setprio 1")
    srd(A, 16, 4, 5, 2048 * 1024)
    for j in range(8):
        A(f"buffer_load_dwordx4 {v(8+4*j,4)}, v7, s[16:19], s38 offen offset:{j*128}")
    A(f"""
    s_or_b32 s46, s2, s3
    s_cmp_lg_u32 s46, 0
    s_cbranch_scc1 {N}_noep
    s_memrealtime s[46:47]
    v_mov_b32 v40, 0
    s_waitcnt lgkmcnt(0)
    v_mov_b32 v42, s46
    v_mov_b32 v43, s47
    s_mov_b64 exec, 1
    global_store_dwordx2 v40, v[42:43], s[14:15] sc1
    s_mov_b64 exec, -1
    """)
    A.label(f"{N}_noep")
    A(f"""
    s_and_b32 s38, s3, 1                   ; rh
    s_bfe_u32 s39, s3, 0x10001             ; hp
    s_lshr_b32 s40, s3, 2                  ; kh
    """)
    srd(A, 20, 6, 7, 512 * 1024)
    A(f"""
    v_bfe_u32 v40, v1, 2, 1                ; pos
    v_bfe_u32 v41, v1, 4, 1                ; (r8>>1)&1
    v_xor_b32 v40, v40, v41                ; q
    v_lshlrev_b32 v127, 6, v40
    v_and_b32 v40, 3, v1
    v_lshl_add_u32 v127, v40, 4, v127
    v_lshl_add_u32 v127, v4, 10, v127      ; + r8*1024   (v4 = l/8)
    s_lshl_b32 s41, s36, 7
    v_add_u32 v127, s41, v127
    s_lshl_b32 s42, s3, 16                 ; w*8*8*1024 global
    s_lshl_b32 s43, s3, 13                 ; w*8*1024 lds
    v_bfe_u32 v40, v1, 2, 2                ; r
    v_lshl_add_u32 v122, v3, 3, v40
    v_lshlrev_b32 v122, 7, v122
    v_lshrrev_b32 v40, 1, v40
    v_xor_b32 v40, s39, v40
    v_lshl_add_u32 v122, v40, 6, v122
    v_bfe_u32 v40, v1, 4, 1
    v_lshl_add_u32 v122, v40, 5, v122
    v_and_b32 v40, 3, v1
    v_lshl_add_u32 v122, v40, 3, v122
    s_lshl_b32 s41, s40, 15
    v_add_u32 v122, s41, v122
    v_mov_b32 v104, 0x3f803f80
    v_mov_b32 v105, 0
    v_mov_b32 v106, 0
    s_waitcnt vmcnt(0)
    """)
    A.stamp(1)
    def wdma(j): return [f"s_add_u32 m0, s43, {j*1024}", f"s_add_u32 s41, s42, {j*8192}", "buffer_load_dwordx4 v127, s[20:23], s41 offen lds"]
    Amain = A
    A = Asm()
    for i in range(32):
        A(f"v_dot2c_f32_bf16 v{105 + (i%2)}, v{8+i}, v104")
    for i in range(32):
        A(f"v_lshlrev_b32 v{40+2*i}, 16, v{8+i}")
        A(f"v_and_b32 v{41+2*i}, 0xffff0000, v{8+i}")
    A("v_add_f32 v105, v105, v106")
    dpp_sum8(A, 105)
    A(f"""
    v_mul_f32 v107, 0x3b000000, v105       ; mean
    v_cvt_pk_bf16_f32 v108, v107, v107
    v_lshlrev_b32 v108, 16, v108           ; m_b
    v_sub_f32 v110, 0, v108
    v_sub_f32 v107, v107, v108             ; delta
    v_mov_b32 v112, 0
    v_mov_b32 v113, 0
    """)
    for i in range(32):
        A(f"v_pk_add_f32 {v(40+2*i,2)}, {v(40+2*i,2)}, v[110:111] op_sel_hi:[1,0]")
    for i in range(32):
        A(f"v_pk_fma_f32 v[112:113], {v(40+2*i,2)}, {v(40+2*i,2)}, v[112:113]")
    A("v_add_f32 v112, v112, v113")
    dpp_sum8(A, 112)
    A(f"""
    v_mul_f32 v112, 0x3b000000, v112
    v_fma_f32 v112, -v107, v107, v112
    v_max_f32 v112, 0, v112
    v_cvt_pk_bf16_f32 v112, v112, v112
    v_lshlrev_b32 v112, 16, v112
    v_add_f32 v112, 0x3727c5ac, v112
    v_cvt_pk_bf16_f32 v112, v112, v112
    v_lshlrev_b32 v112, 16, v112
    v_sqrt_f32 v112, v112
    s_nop 0
    v_cvt_pk_bf16_f32 v112, v112, v112
    v_lshlrev_b32 v112, 16, v112
    v_rcp_f32 v110, v112
    """)
    for i in range(32):
        A(f"v_cvt_pk_bf16_f32 v{8+i}, v{40+2*i}, v{41+2*i}")
    for i in range(32):
        A(f"v_lshlrev_b32 v{40+2*i}, 16, v{8+i}")
        A(f"v_and_b32 v{41+2*i}, 0xffff0000, v{8+i}")
    for i in range(32):
        A(f"v_pk_mul_f32 {v(40+2*i,2)}, {v(40+2*i,2)}, v[110:111] op_sel_hi:[1,0]")
    for i in range(32):
        A(f"v_cvt_pk_bf16_f32 v{8+i}, v{40+2*i}, v{41+2*i}")
    ln = A.lines
    A = Amain
    interleave(A, ln, [wdma(j) for j in range(8)], start=0, every=12)
    A.stamp(2)
    A(f"""
    s_waitcnt vmcnt(0)
    s_barrier
    """)
    for st in range(16):
        A(f"ds_read_b64_tr_b16 {v(40+4*st,2)}, v122 offset:{st*2048}")
        A(f"ds_read_b64_tr_b16 {v(42+4*st,2)}, v122 offset:{st*2048+512}")
    A(f"""
    s_and_b32 s41, s3, 3
    s_lshl_b32 s41, s41, 3
    v_add_u32 v4, s41, v4                  ; m
    v_xor_b32 v4, v4, v5
    v_lshlrev_b32 v4, 4, v4
    v_lshrrev_b32 v7, 1, v5
    v_lshl_add_u32 v4, v7, 10, v4
    v_and_b32 v7, 1, v5
    v_lshl_add_u32 v4, v7, 9, v4
    s_lshl_b32 s41, s40, 15                ; (w/4)*32768
    v_add_u32 v4, s41, v4
    v_xor_b32 v7, v2, v3
    v_lshlrev_b32 v7, 4, v7
    v_lshl_add_u32 v7, v3, 9, v7
    s_lshl_b32 s41, s38, 15
    s_lshl_b32 s42, s40, 14
    s_add_u32 s41, s41, s42
    v_add_u32 v120, s41, v7
    v_xor_b32 v121, 32, v120
    v_xor_b32 v122, 64, v120
    v_xor_b32 v123, 96, v120
    s_waitcnt lgkmcnt(0)
    s_barrier
    """)
    for j in range(8):
        A(f"ds_write_b128 v4, {v(8+4*j,4)} offset:{j*4096}")
    A("s_waitcnt lgkmcnt(0)")
    A("s_barrier")
    A.stamp(3)
    QD = 104
    A.label(f"{N}_qproj")
    def brd(st): A(f"ds_read_b128 {v(8+4*(st%4),4)}, v{120 + st%4} offset:{st*1024}")
    brd(0); brd(1); brd(2)
    for st in range(16):
        if st + 3 < 16:
            brd(st+3); A("s_waitcnt lgkmcnt(3)")
        else:
            A(f"s_waitcnt lgkmcnt({15-st})")
        c_ = "0" if st == 0 else v(QD,16)
        A(f"v_mfma_f32_32x32x16_bf16 {v(QD,16)}, {v(40+4*st,4)}, {v(8+4*(st%4),4)}, {c_}")
    A(f"""
    s_barrier
    """)
    A(f"""
    s_lshl_b32 s41, s3, 11
    s_add_u32 s41, s41, 65536
    v_add_u32 v7, s41, v6
    s_xor_b32 s41, s41, 8192
    v_add_u32 v4, s41, v6
    s_cmp_eq_u32 s40, 0
    s_cbranch_scc1 {N}_nosw
    """)
    for i in range(8): A(f"v_swap_b32 v{QD+i}, v{QD+8+i}")
    A.label(f"{N}_nosw")
    A(f"""
    ds_write_b128 v7, {v(QD+8,4)}
    ds_write_b128 v7, {v(QD+12,4)} offset:1024
    s_waitcnt lgkmcnt(0)
    s_barrier
    ds_read_b128 {v(40,4)}, v4
    ds_read_b128 {v(44,4)}, v4 offset:1024
    s_waitcnt lgkmcnt(0)
    """)
    for i in range(8): A(f"v_add_f32 v{QD+i}, v{QD+i}, v{40+i}")
    A.stamp(4)
    cq = 0.25 * math.log2(math.e)
    A(f"s_mov_b32 s41, {f2u(cq)}")
    for i in range(8): A(f"v_mul_f32 v{QD+i}, s41, v{QD+i}")
    for i in range(4): A(f"v_cvt_pk_bf16_f32 v{Q+i}, v{QD+2*i}, v{QD+2*i+1}")
    srd_off(A, 24, 12, 13, WS_KV, (128 << 10) + 256)
    srd_off(A, 28, 12, 13, WS_AT, AT_BYTES)
    A(f"""
    s_lshl_b32 s39, s39, 1
    s_add_u32 s39, s39, s40
    s_lshl_b32 s40, s3, 11
    s_mov_b32 s60, 0x0000ffff
    s_mov_b32 s61, 0x0000ffff
    v_mov_b32 v{vKl}, v6
    v_and_b32 v11, 15, v1
    v_lshlrev_b32 v11, 4, v11
    v_lshl_add_u32 v{vVl}, v3, 8, v11
    v_mov_b32 v15, 0x3f803f80
    v_cmp_eq_u32 vcc, 16, v2
    s_mov_b32 s50, 0                       ; cur slot offset (chunk c -> slot c%5)
    s_mov_b32 s51, {SLOT}
    s_mov_b32 s52, 0
    v_mov_b32 v13, 0
    """)
    for i in range(16): A(f"v_cndmask_b32 v{Vf+i}, 0, v15, vcc")
    for i in range(4): A(f"v_dot2c_f32_bf16 v13, v{Q+i}, v{Q+i}")
    for i in range(16): A(f"v_mov_b32 v{O+i}, 0")
    for i in range(8): A(f"v_mov_b32 v{P+i}, 0")
    A(f"""
    v_add_u32 v{vKc}, s50, v{vKl}
    v_add_u32 v{vVc}, s50, v{vVl}
    v_add_u32 v{vKn}, s51, v{vKl}
    v_add_u32 v{vVn}, s51, v{vVl}
    v_mov_b32 v15, v13
    s_and_b32 s49, s2, 7
    s_lshl_b32 s49, s49, 10
    s_add_u32 s49, s49, {FLG_KVR}
    """)
    A("s_nop 1")
    A(f"v_permlane32_swap_b32 v13, v15")
    A(f"v_add_f32 v13, v13, v15")
    A("s_setprio 0")
    poll_kv(A, N, "s49")
    A.stamp(5)
    def chunk_load(lds_s, glob_s):
        for j in range(2):
            A(f"""s_add_u32 m0, {lds_s[0]}, {lds_s[1] + j*1024}
            s_add_u32 s41, {glob_s[0]}, {glob_s[1] + j*1024}
            buffer_load_dwordx4 v6, s[24:27], s41 offen lds""")
    chunk_load(("s40", 0), ("s40", 0))
    A(f"""
    v_lshlrev_b32 v7, 2, v1
    s_mov_b32 s41, {128<<10}
    buffer_load_dword v8, v7, s[24:27], s41 offen
    """)
    for cch in range(1, 5): chunk_load(("s40", cch*SLOT), ("s40", cch*SLOT))
    A("s_waitcnt vmcnt(8)")
    A("s_barrier")
    A(f"""
    ds_read_b128 {v(Kf,4)}, v{vKc} offset:0
    ds_read_b128 {v(Kf+4,4)}, v{vKc} offset:2048
    s_mov_b64 exec, s[60:61]
    ds_read_b128 {v(Vf,4)}, v{vVc} offset:1024
    ds_read_b128 {v(Vf+4,4)}, v{vVc} offset:1536
    s_mov_b64 exec, -1
    """)
    lane_reduce_max(A, 8, 44, 62)
    A(f"""
    v_mul_f32 v13, s62, v13
    v_sqrt_f32 v13, v13
    s_nop 0
    v_mul_f32 v13, 0x3f828f5c, v13
    v_cmp_lt_f32 vcc, 0x42200000, v13
    s_cmp_lg_u64 vcc, 0
    s_cbranch_scc0 {N}_fast
    v_mov_b32 v13, 0xff800000
    s_mov_b32 s41, 0
    """)
    A.label(f"{N}_slow")
    A(f"""
    buffer_load_dwordx4 {v(P,4)}, v6, s[24:27], s41 offen
    s_waitcnt vmcnt(0)
    v_mfma_f32_32x32x16_bf16 {v(S0,16)}, {v(P,4)}, {v(Q,4)}, 0
    s_nop 15
    s_nop 7
    """)
    for i in range(8): A(f"v_max3_f32 v13, v{S0+2*i}, v{S0+2*i+1}, v13")
    A(f"""
    s_add_u32 s41, s41, 2048
    s_cmp_lt_u32 s41, {128<<10}
    s_cbranch_scc1 {N}_slow
    v_mov_b32 v15, v13
    s_nop 1
    v_permlane32_swap_b32 v13, v15
    v_max_f32 v13, v13, v15
    """)
    for i in range(4): A(f"v_mov_b32 v{P+i}, 0")
    A.label(f"{N}_fast")
    for i in range(16): A(f"v_sub_f32 v{C+i}, 0, v13")
    A(f"""
    s_waitcnt lgkmcnt(0)
    v_mfma_f32_32x32x16_bf16 {v(S0,16)}, {v(Kf,4)}, {v(Q,4)}, {v(C,16)}
    s_nop 15
    """)
    def chunk_issue():
        lab = A.newlabel(f"{N}_noissue")
        A(f"""
        s_add_u32 s53, s52, -1
        s_cmp_gt_u32 s53, 2
        s_cbranch_scc1 {lab}
        s_lshl_b32 s54, s53, 14
        s_add_u32 s54, s54, s40
        s_add_u32 s55, s52, 4
        s_lshl_b32 s55, s55, 14
        s_add_u32 s55, s55, s40
        """)
        chunk_load(("s54", 0), ("s55", 0))
        A.label(lab)
    A.chunk_issue = chunk_issue
    A.stamp(6)
    A.raw(".p2align 6")
    A.label(f"{N}_loop")
    for i in range(8): att_stage(A, i)
    A(f"""
    s_mov_b32 s50, s51
    s_add_u32 s51, s51, {SLOT}
    s_cmp_ge_u32 s51, {5*SLOT}
    s_cselect_b32 s51, 0, s51
    v_mov_b32 v{vKc}, v{vKn}
    v_mov_b32 v{vVc}, v{vVn}
    v_add_u32 v{vKn}, s51, v{vKl}
    v_add_u32 v{vVn}, s51, v{vVl}
    s_add_u32 s52, s52, 1
    s_cmp_lt_u32 s52, 8
    s_cbranch_scc1 {N}_loop
    """)
    A(f"v_mfma_f32_32x32x16_bf16 {v(O,16)}, {v(Vf+8+4,4)}, {v(P+4,4)}, {v(O,16)}")
    A(f"""
    s_lshl_b32 s41, s37, 1
    s_add_u32 s41, s41, s38
    s_mul_i32 s41, s41, {144*1024}
    s_lshl_b32 s42, s36, 12
    s_lshl_b32 s43, s39, 10
    s_add_u32 s41, s41, s42
    s_add_u32 s41, s41, s43
    s_nop 15
    v_mov_b32 v14, v{O+8}
    v_mov_b32 v15, v{O+8}
    s_nop 1
    v_permlane32_swap_b32 v15, v14
    v_rcp_f32 v15, v15
    s_nop 0
    """)
    for i in range(8): A(f"v_mul_f32 v{O+i}, v{O+i}, v15")
    for i in range(4): A(f"v_cvt_pk_bf16_f32 v{P+i}, v{O+2*i}, v{O+2*i+1}")
    A(f"buffer_store_dwordx4 {v(P,4)}, v6, s[28:31], s41 offen sc1")
    A(f"""s_lshl_b32 s49, s37, 7
    s_lshl_b32 s41, s36, 3
    s_add_u32 s49, s49, s41
    s_add_u32 s49, s49, {FLG_O}""")
    signal(A, N, "s49")
    A.stamp_flush(1, 12, 13, 3, 1, 8)
    A("s_endpgm")
    A.label(f"{N}_gmain")
    A(f"""
    s_cmp_gt_u32 s2, 383
    s_cbranch_scc1 {N}_gmain2
    """)
    gen_kvx(A, N)
    A.label(f"{N}_gmain2")
    gen_g(A, N, prio, lowprio)
    A.label(f"{N}_end")
    A("s_endpgm")
    return A.text(), kernel_desc(name, 128, 100)


def gen_kvx(A, N):
    A("s_setprio 3")
    A(f"""
    s_sub_u32 s36, s2, 256
    s_lshr_b32 s37, s36, 1                 ; tile
    s_and_b32 s36, s36, 1                  ; kind
    v_lshrrev_b32 v4, 4, v1                ; r4
    v_and_b32 v5, 15, v1                   ; c16
    v_lshlrev_b32 v7, 10, v4
    v_lshl_add_u32 v7, v5, 4, v7
    s_lshl_b32 s38, s37, 15                ; tile*32*1024
    s_lshl_b32 s39, s3, 12                 ; w*4*1024
    s_add_u32 s38, s38, s39
    """)
    srd(A, 16, 4, 5, 2048 * 1024)
    for j in range(4):
        A(f"buffer_load_dwordx4 {v(8+4*j,4)}, v7, s[16:19], s38 offen offset:{j*256}")
    A(f"""
    s_cmp_eq_u32 s36, 1
    s_cselect_b32 s24, s10, s8
    s_cselect_b32 s25, s11, s9
    s_and_b32 s25, s25, 0xffff
    s_mov_b32 s26, {512*32}
    s_mov_b32 s27, 0x00020000
    s_lshl_b32 s43, s3, 11
    s_add_u32 m0, s43, 32768
    s_add_u32 s41, s43, 1024
    buffer_load_dwordx4 v6, s[24:27], s43 offen lds
    s_add_u32 m0, s43, {32768+1024}
    s_nop 0
    buffer_load_dwordx4 v6, s[24:27], s41 offen lds
    ; X write addr: piece j: s = 8j + c16/2, h' = c16%2, m' = (4w + r4) ^ (c16%8)
    s_lshl_b32 s41, s3, 2
    v_add_u32 v40, s41, v4
    v_and_b32 v41, 7, v5
    v_xor_b32 v40, v40, v41
    v_lshlrev_b32 v40, 4, v40
    v_lshrrev_b32 v41, 1, v5
    v_lshl_add_u32 v40, v41, 10, v40
    v_and_b32 v41, 1, v5
    v_lshl_add_u32 v60, v41, 9, v40
    v_xor_b32 v40, v2, v3
    v_lshlrev_b32 v40, 4, v40
    v_lshl_add_u32 v40, v3, 9, v40
    s_lshl_b32 s41, s3, 12
    v_add_u32 v61, s41, v40
    v_xor_b32 v62, 32, v61
    v_xor_b32 v63, 64, v61
    v_xor_b32 v64, 96, v61
    v_bfe_u32 v40, v1, 2, 2
    v_lshl_add_u32 v40, v3, 3, v40
    v_lshlrev_b32 v40, 5, v40
    v_and_b32 v41, 3, v1
    v_lshl_add_u32 v40, v41, 3, v40
    s_lshl_b32 s41, s3, 11
    s_add_u32 s41, s41, 32768
    v_add_u32 v65, s41, v40
    v_mov_b32 v56, 0x3f803f80
    v_mov_b32 v57, 0
    s_waitcnt vmcnt(2)
    """)
    def sum16(r):
        for ctrl in ("quad_perm:[1,0,3,2]", "quad_perm:[2,3,0,1]", "row_half_mirror", "row_mirror"):
            A("s_nop 1")
            A(f"v_add_f32_dpp v{r}, v{r}, v{r} {ctrl} row_mask:0xf bank_mask:0xf")
    for i in range(16): A(f"v_dot2c_f32_bf16 v57, v{8+i}, v56")
    for i in range(16):
        A(f"v_lshlrev_b32 v{24+2*i}, 16, v{8+i}")
        A(f"v_and_b32 v{25+2*i}, 0xffff0000, v{8+i}")
    sum16(57)
    A(f"""
    v_mul_f32 v57, 0x3b000000, v57
    v_cvt_pk_bf16_f32 v58, v57, v57
    v_lshlrev_b32 v58, 16, v58
    v_sub_f32 v66, 0, v58
    v_sub_f32 v57, v57, v58
    v_mov_b32 v68, 0
    v_mov_b32 v69, 0
    """)
    for i in range(16): A(f"v_pk_add_f32 {v(24+2*i,2)}, {v(24+2*i,2)}, v[66:67] op_sel_hi:[1,0]")
    for i in range(16): A(f"v_pk_fma_f32 v[68:69], {v(24+2*i,2)}, {v(24+2*i,2)}, v[68:69]")
    A("v_add_f32 v68, v68, v69")
    sum16(68)
    A(f"""
    v_mul_f32 v68, 0x3b000000, v68
    v_fma_f32 v68, -v57, v57, v68
    v_max_f32 v68, 0, v68
    v_cvt_pk_bf16_f32 v68, v68, v68
    v_lshlrev_b32 v68, 16, v68
    v_add_f32 v68, 0x3727c5ac, v68
    v_cvt_pk_bf16_f32 v68, v68, v68
    v_lshlrev_b32 v68, 16, v68
    v_sqrt_f32 v68, v68
    s_nop 0
    v_cvt_pk_bf16_f32 v68, v68, v68
    v_lshlrev_b32 v68, 16, v68
    v_rcp_f32 v66, v68
    """)
    for i in range(16): A(f"v_cvt_pk_bf16_f32 v{8+i}, v{24+2*i}, v{25+2*i}")
    for i in range(16):
        A(f"v_lshlrev_b32 v{24+2*i}, 16, v{8+i}")
        A(f"v_and_b32 v{25+2*i}, 0xffff0000, v{8+i}")
    for i in range(16): A(f"v_pk_mul_f32 {v(24+2*i,2)}, {v(24+2*i,2)}, v[66:67] op_sel_hi:[1,0]")
    for i in range(16): A(f"v_cvt_pk_bf16_f32 v{8+i}, v{24+2*i}, v{25+2*i}")
    for j in range(4): A(f"ds_write_b128 v60, {v(8+4*j,4)} offset:{j*8192}")
    A("s_waitcnt vmcnt(0) lgkmcnt(0)")
    A("s_barrier")
    for st in range(4):
        A(f"ds_read_b128 {v(8+4*st,4)}, v{61+st} offset:{st*1024}")
        A(f"ds_read_b64_tr_b16 {v(24+4*st,2)}, v65 offset:{st*512}")
        A(f"ds_read_b64_tr_b16 {v(26+4*st,2)}, v65 offset:{st*512+128}")
    KD = 40
    srd_off(A, 24, 12, 13, WS_KV, (128 << 10) + 256)
    A(f"""
    s_lshl_b32 s41, s3, 11
    s_add_u32 s41, s41, 49152
    v_add_u32 v4, s41, v6
    v_lshlrev_b32 v5, 4, v2
    v_lshl_add_u32 v5, v3, 8, v5           ; (h*16+m)*16
    v_add_u32 v7, s41, v5
    v_cmp_gt_u32 vcc, 16, v2
    s_mov_b64 s[50:51], vcc
    s_cmp_eq_u32 s36, 1
    s_cbranch_scc1 {N}_xv
    """)
    for st in range(4):
        A(f"s_waitcnt lgkmcnt({3*(3-st)})")
        A(f"v_mfma_f32_32x32x16_bf16 {v(KD,16)}, {v(24+4*st,4)}, {v(8+4*st,4)}, {'0' if st == 0 else v(KD,16)}")
    A(f"""
    s_nop 15
    ds_write_b128 v4, {v(KD,4)}
    ds_write_b128 v4, {v(KD+4,4)} offset:1024
    s_waitcnt lgkmcnt(0)
    s_barrier
    s_cmp_lg_u32 s3, 0
    s_cbranch_scc1 {N}_xsig
    """)
    for ww in range(8):
        A(f"ds_read_b128 {v(8+8*ww,4)}, v4 offset:{ww*2048}")
        A(f"ds_read_b128 {v(12+8*ww,4)}, v4 offset:{ww*2048+1024}")
    A("s_waitcnt lgkmcnt(0)")
    for i in range(0, 8, 2):
        for a_, b_ in ((8, 16), (24, 32), (40, 48), (56, 64)): A(f"v_pk_add_f32 {v(a_+i,2)}, {v(a_+i,2)}, {v(b_+i,2)}")
    for i in range(0, 8, 2):
        A(f"v_pk_add_f32 {v(8+i,2)}, {v(8+i,2)}, {v(24+i,2)}")
        A(f"v_pk_add_f32 {v(40+i,2)}, {v(40+i,2)}, {v(56+i,2)}")
    for i in range(0, 8, 2): A(f"v_pk_add_f32 {v(8+i,2)}, {v(8+i,2)}, {v(40+i,2)}")
    for i in range(4): A(f"v_cvt_pk_bf16_f32 v{16+i}, v{8+2*i}, v{9+2*i}")
    A(f"""
    s_lshl_b32 s42, s37, 11
    buffer_store_dwordx4 v[16:19], v6, s[24:27], s42 offen sc1
    v_mul_f32 v20, v8, v8
    """)
    for i in range(1, 8): A(f"v_fmac_f32 v20, v{8+i}, v{8+i}")
    A(f"""
    v_mov_b32 v21, v20
    s_nop 1
    v_permlane32_swap_b32 v20, v21
    v_add_f32 v20, v20, v21
    """)
    lane_reduce_max(A, 20, 44, 43)
    A(f"""
    s_lshl_b32 s44, s37, 2
    s_add_u32 s44, s44, {128<<10}
    v_mov_b32 v21, s43
    v_mov_b32 v22, 0
    s_mov_b64 exec, 1
    buffer_store_dword v21, v22, s[24:27], s44 offen sc1
    s_mov_b64 exec, -1
    s_branch {N}_xsig
    """)
    A.label(f"{N}_xv")
    srd_off(A, 16, 12, 13, WS_XN, 2048 * 1024)
    for st in range(4):
        A(f"s_waitcnt lgkmcnt({3*(3-st)})")
        A(f"v_mfma_f32_32x32x16_bf16 {v(KD,16)}, {v(8+4*st,4)}, {v(24+4*st,4)}, {'0' if st == 0 else v(KD,16)}")
    A(f"""
    s_lshl_b32 s41, s37, 15
    s_lshl_b32 s42, s3, 12
    s_add_u32 s41, s41, s42
    """)
    for st in range(4):
        A(f"buffer_store_dwordx4 {v(8+4*st,4)}, v6, s[16:19], s41 offen offset:{st*1024} sc1")
    A("s_nop 7")
    A("s_mov_b64 exec, s[50:51]")
    for qd in range(4): A(f"ds_write_b128 v7, {v(KD+4*qd,4)} offset:{qd*512}")
    A(f"""
    s_mov_b64 exec, -1
    s_waitcnt lgkmcnt(0)
    s_barrier
    s_cmp_gt_u32 s3, 1
    s_cbranch_scc1 {N}_xsig
    s_lshl_b32 s41, s3, 10                 ; j*1024
    s_add_u32 s41, s41, 49152
    v_add_u32 v7, s41, v5
    s_mov_b64 exec, s[50:51]
    """)
    for ww in range(8):
        A(f"ds_read_b128 {v(8+8*ww,4)}, v7 offset:{ww*2048}")
        A(f"ds_read_b128 {v(12+8*ww,4)}, v7 offset:{ww*2048+512}")
    A("s_waitcnt lgkmcnt(0)")
    for i in range(0, 8, 2):
        for a_, b_ in ((8, 16), (24, 32), (40, 48), (56, 64)): A(f"v_pk_add_f32 {v(a_+i,2)}, {v(a_+i,2)}, {v(b_+i,2)}")
    for i in range(0, 8, 2):
        A(f"v_pk_add_f32 {v(8+i,2)}, {v(8+i,2)}, {v(24+i,2)}")
        A(f"v_pk_add_f32 {v(40+i,2)}, {v(40+i,2)}, {v(56+i,2)}")
    for i in range(0, 8, 2): A(f"v_pk_add_f32 {v(8+i,2)}, {v(8+i,2)}, {v(40+i,2)}")
    for i in range(4): A(f"v_cvt_pk_bf16_f32 v{16+i}, v{8+2*i}, v{9+2*i}")
    A(f"""
    s_lshl_b32 s41, s37, 11
    s_lshl_b32 s42, s3, 9
    s_add_u32 s41, s41, s42
    s_add_u32 s41, s41, 1024
    buffer_store_dwordx4 v[16:19], v5, s[24:27], s41 offen sc1
    s_mov_b64 exec, -1
    """)
    A.label(f"{N}_xsig")
    done = A.newlabel("xsig")
    A(f"""
    s_waitcnt vmcnt(0)
    s_barrier
    s_cmp_lg_u32 s3, 0
    s_cbranch_scc1 {done}
    """)
    get_epoch(A, N)
    A(f"""
    s_lshl_b32 s41, s37, 4
    s_lshl_b32 s42, s36, 3
    s_add_u32 s41, s41, s42
    s_add_u32 s41, s41, {FLG_KVR}
    v_lshlrev_b32 v5, 10, v1
    v_add_u32 v5, s41, v5
    s_lshr_b32 s42, s37, 2
    s_lshl_b32 s42, s42, 7
    s_and_b32 s43, s37, 3
    s_lshl_b32 s43, s43, 3
    s_add_u32 s42, s42, s43
    s_add_u32 s42, s42, {FLG_XN}
    v_mov_b32 v4, s42
    v_cmp_eq_u32 vcc, 8, v1
    s_nop 1
    v_cndmask_b32 v5, v5, v4, vcc
    v_mov_b32 v124, s{EP}
    v_mov_b32 v125, s{EP+1}
    s_lshl_b32 s42, s36, 8
    s_or_b32 s42, s42, 0xff
    s_mov_b32 exec_lo, s42
    s_mov_b32 exec_hi, 0
    global_store_dwordx2 v5, v[124:125], s[12:13] sc1
    s_mov_b64 exec, -1
    """)
    A.label(done)

ACC, AF, BF, DBF, XR_, TD, TB_ = 16, 80, 96, 96, 120, 124, 126
DR = 3
def gen_g(A, name, prio, lowprio):
    V = VM(A)
    A(f"""
    s_setprio {lowprio}
    s_sub_u32 s2, s2, 256
    s_load_dwordx4 s[4:7], s[0:1], 48
    s_load_dwordx4 s[8:11], s[0:1], 64
    s_load_dwordx2 s[56:57], s[0:1], 0     ; x
    s_load_dwordx2 s[58:59], s[0:1], 32    ; wo
    v_lshlrev_b32 v{TB_}, 7, v1            ; lane*128
    s_and_b32 s61, s2, 31
    s_lshr_b32 s60, s2, 5                  ; nb
    s_waitcnt lgkmcnt(0)
    """)
    srd_off(A, 28, 12, 13, WS_AT, AT_BYTES)
    srd(A, 64, 8, 9, 1792 * 1024)
    srd(A, 32, 58, 59, 512 * 1024)
    A(f"""
    s_cmp_ge_u32 s2, 224
    s_cbranch_scc1 {name}_down
    s_mov_b32 s53, s2
    """)
    A(f"""
    s_and_b32 s36, s53, 7
    s_lshr_b32 s37, s53, 3
    s_and_b32 s38, s36, 3
    s_lshl_b32 s38, s38, 2
    s_and_b32 s39, s37, 3
    s_add_u32 s38, s38, s39                ; mb
    s_lshr_b32 s39, s36, 2
    s_mul_i32 s39, s39, 7
    s_lshr_b32 s37, s37, 2
    s_add_u32 s39, s39, s37                ; fb
    s_and_b32 s36, s3, 1                   ; wm
    s_lshr_b32 s37, s3, 1                  ; wf 0..3
    """)
    srd(A, 16, 4, 5, 512 * 3584)
    srd(A, 20, 6, 7, 512 * 3584)
    srd_off(A, 24, 12, 13, WS_XN, 2048 * 1024)
    A(f"""
    v_lshrrev_b32 v7, 4, v1
    v_bfe_u32 v8, v1, 2, 2
    v_xor_b32 v8, v8, v7
    s_mov_b32 s40, 3584
    v_mul_lo_u32 v7, v7, s40
    v_lshl_add_u32 v7, v8, 6, v7
    v_and_b32 v8, 3, v1
    v_lshl_add_u32 v7, v8, 4, v7
    s_lshl_b32 s41, s38, 2
    s_add_u32 s41, s41, s37
    s_lshl_b32 s41, s41, 15
    s_lshl_b32 s42, s36, 10
    s_add_u32 s41, s41, s42
    s_mul_i32 s42, s3, {4*3584}
    s_lshl_b32 s43, s39, 8
    s_add_u32 s42, s42, s43
    s_lshl_b32 s44, s3, 10
    """)
    def gX(slot, st): return ([f"s_add_u32 m0, s44, {slot}"], "buffer_load_dwordx4 v6, s[24:27], s41 offen lds", ("S", st), ["s_add_u32 s41, s41, 2048"])
    def gW(slot, st): return [
          ([f"s_add_u32 m0, s44, {slot + 8192}"], "buffer_load_dwordx4 v7, s[16:19], s42 offen lds", ("S", st), []),
          ([f"s_add_u32 m0, s44, {slot + 16384}"], "buffer_load_dwordx4 v7, s[20:23], s42 offen lds", ("S", st), [f"s_add_u32 s42, s42, {32*3584}"])]
    def emit4(g):
        for x in g[0]: A(x)
        if len(g[0]) == 1: A("s_nop 0")
        V.op(g[1], g[2])
        for x in g[3]: A(x)
    for sl in range(3):
        for g in gW(sl*STG, sl): emit4(g)
    A(f"""
    v_bfe_u32 v8, v1, 2, 2
    v_lshl_add_u32 v9, v3, 3, v8
    v_lshlrev_b32 v9, 8, v9
    v_bfe_u32 v10, v1, 4, 1
    v_lshl_add_u32 v9, v10, 5, v9
    v_and_b32 v10, 3, v1
    v_lshl_add_u32 v9, v10, 3, v9
    v_add_u32 v9, 8192, v9
    v_xor_b32 v10, s37, v8
    v_lshl_add_u32 v10, v10, 6, v9         ; A addr
    s_lshl_b32 s46, s36, 12
    v_add_u32 v12, s46, v6                 ; B addr
    s_lshl_b32 s49, s38, 7
    s_add_u32 s49, s49, {FLG_XN}
    """)
    poll(A, name, "s49", 4, need_epoch=True)
    for sl in range(3): emit4(gX(sl*STG, sl))
    def acc(gu, mt): return ACC + 16*(gu*2 + mt)
    def reads(ks, slot):
        L = []
        for mt in range(2):
            L.append(f"ds_read_b128 {v(BF+8*ks+4*mt,4)}, v12 offset:{slot*STG + mt*2048 + ks*1024}")
        for gu in range(2):
            fr = AF + 8*ks + 4*gu
            off = slot*STG + gu*8192 + ks*4096
            L.append(f"ds_read_b64_tr_b16 {v(fr,2)}, v10 offset:{off}")
            L.append(f"ds_read_b64_tr_b16 {v(fr+2,2)}, v10 offset:{off+1024}")
        return L
    def mf(ks, first):
        return [f"v_mfma_f32_32x32x16_bf16 {v(acc(gu,mt),16)}, {v(AF+8*ks+4*gu,4)}, {v(BF+8*ks+4*mt,4)}, {'0' if first else v(acc(gu,mt),16)}"
                for gu in range(2) for mt in range(2)]
    V.wait([("S", 0)])
    A("s_barrier")
    for x in reads(0, 0): A(x)
    A.stamp(1)
    for st in range(16):
        slot = st % 3
        A("s_waitcnt lgkmcnt(0)")
        R1 = reads(1, slot); m0 = mf(0, st == 0)
        ri = 0
        for i in range(4):
            A(m0[i])
            for _ in range(2 if i < 2 else 1):
                if ri < len(R1): A(R1[ri]); ri += 1
        if st < 15:
            V.wait([("S", st+1)], " lgkmcnt(0)")
            A("s_barrier")
        else:
            A("s_waitcnt lgkmcnt(0)")
        G = ([gX(slot*STG, st+3)] + gW(slot*STG, st+3)) if st + 3 < 16 else []
        m1 = mf(1, False); R0 = reads(0, (st+1) % 3) if st < 15 else []
        ri = 0
        for i in range(4):
            A(m1[i])
            for _ in range(2 if i < 2 else 1):
                if ri < len(R0): A(R0[ri]); ri += 1
            if i < len(G): emit4(G[i])
    A(f"s_setprio {prio}")
    A.nop(16)
    A.stamp(2)
    c0 = -2.0 * math.log2(math.e) * math.sqrt(2.0 / math.pi)
    c1 = c0 * 0.044715
    A(f"""
    s_lshl_b32 s48, s38, 2
    s_lshl_b32 s49, s36, 1
    s_add_u32 s48, s48, s49
    s_mul_i32 s48, s48, {144*1024}
    s_lshl_b32 s49, s39, 3
    s_lshl_b32 s53, s37, 1
    s_add_u32 s49, s49, s53
    s_add_u32 s49, s49, 32
    s_lshl_b32 s49, s49, 10
    s_add_u32 s48, s48, s49
    v_mov_b32 v12, {f2u(c0)}
    v_mov_b32 v14, {f2u(c1)}
    v_mov_b32 v10, 1.0
    """)
    T = AF
    for mt in range(2):
        G_, U = acc(0, mt), acc(1, mt)
        for i0 in range(0, 16, 8):
            R = range(0, 8, 2)
            for i in R: A(f"v_pk_mul_f32 {v(T+i,2)}, {v(G_+i0+i,2)}, {v(G_+i0+i,2)}")
            for i in R: A(f"v_pk_fma_f32 {v(T+i,2)}, {v(T+i,2)}, v[14:15], v[12:13] op_sel_hi:[1,0,0]")
            for i in R: A(f"v_pk_mul_f32 {v(T+i,2)}, {v(T+i,2)}, {v(G_+i0+i,2)}")
            for i in range(8): A(f"v_exp_f32 v{T+i}, v{T+i}")
            for i in R: A(f"v_pk_mul_f32 {v(G_+i0+i,2)}, {v(G_+i0+i,2)}, {v(U+i0+i,2)}")
            for i in R: A(f"v_pk_add_f32 {v(T+i,2)}, {v(T+i,2)}, v[10:11] op_sel_hi:[1,0]")
            for i in range(8): A(f"v_rcp_f32 v{T+i}, v{T+i}")
            A("s_nop 0")
            for i in R: A(f"v_pk_mul_f32 {v(G_+i0+i,2)}, {v(G_+i0+i,2)}, {v(T+i,2)}")
        for i in range(8):
            A(f"v_cvt_pk_bf16_f32 v{U+i}, v{G_+2*i}, v{G_+2*i+1}")
    A(f"s_setprio {lowprio}")
    for mt in range(2):
        U = acc(1, mt)
        A(f"s_add_u32 s49, s48, {mt*144*1024}")
        A(f"buffer_store_dwordx4 {v(U,4)}, v6, s[28:31], s49 offen sc1")
        A(f"buffer_store_dwordx4 {v(U+4,4)}, v6, s[28:31], s49 offen offset:1024 sc1")
    A(f"""s_lshl_b32 s49, s38, 7
    s_lshl_b32 s53, s39, 3
    s_add_u32 s49, s49, s53
    s_add_u32 s49, s49, {FLG_H}""")
    signal(A, name, "s49")
    A.stamp(3)
    A(f"s_branch {name}_down2")
    A.label(f"{name}_down")
    A(f"""
    s_sub_u32 s53, s2, 224
    s_lshr_b32 s53, s53, 3
    s_lshl_b32 s53, s53, 3
    s_add_u32 s53, s53, s3                 ; 0..31
    s_mul_i32 s54, s53, {56*1024}
    s_lshl_b32 s55, s53, 14
    """)
    for j in range(7):
        A(f"s_add_u32 s48, s54, {j*8192}")
        A(f"buffer_load_dword v{TD}, v{TB_}, s[64:67], s48 offen")
        A("s_waitcnt vmcnt(2)")
    for j in range(2):
        A(f"s_add_u32 s48, s55, {j*8192}")
        A(f"buffer_load_dword v{TD}, v{TB_}, s[32:35], s48 offen")
    A.label(f"{name}_down2")
    V.reset()
    A(f"""
    s_mov_b32 s37, s61
    s_mov_b32 s36, s60
    """)
    srd(A, 16, 56, 57, 2048 * 1024)
    srd(A, 20, 10, 11, 2048 * 1024)
    A(f"""
    v_lshrrev_b32 v9, 3, v1
    v_bfe_u32 v10, v1, 2, 1
    v_bfe_u32 v11, v1, 4, 1
    v_xor_b32 v10, v10, v11
    v_lshlrev_b32 v9, 10, v9
    v_lshl_add_u32 v9, v10, 6, v9
    v_and_b32 v10, 3, v1
    v_lshl_add_u32 v9, v10, 4, v9
    s_lshl_b32 s40, s36, 7
    v_add_u32 v9, s40, v9
    s_mul_i32 s41, s3, {224*1024}
    s_mul_i32 s42, s3, {14*1024}
    s_add_u32 s42, s42, {32*1024}
    s_lshl_b32 s43, s37, 1
    s_mul_i32 s43, s43, {144*1024}
    s_add_u32 s42, s42, s43
    s_mul_i32 s44, s3, {4*2048}
    v_bfe_u32 v10, v1, 2, 2
    v_lshl_add_u32 v11, v3, 2, v10
    v_lshlrev_b32 v11, 7, v11
    v_bfe_u32 v12, v1, 4, 1
    v_lshl_add_u32 v11, v12, 5, v11
    v_and_b32 v12, 3, v1
    v_lshl_add_u32 v11, v12, 3, v11
    v_add_u32 v11, s44, v11
    v_lshrrev_b32 v10, 1, v10
    v_lshl_add_u32 v12, v10, 6, v11
    v_xor_b32 v10, 1, v10
    v_lshl_add_u32 v13, v10, 6, v11
    """)
    WR = 4
    def issueW(k, srdW, tag):
        slot = k % WR
        return [([f"s_add_u32 m0, s44, {slot*2048 + j*1024}", f"s_add_u32 s46, s41, {j*8192}"], f"buffer_load_dwordx4 v9, s[{srdW}:{srdW+3}], s46 offen lds", tag, ["s_add_u32 s41, s41, 16384"] if j == 1 else []) for j in range(2)]
    def issueB(k, tag):
        slot = k % DR
        return [([f"s_add_u32 s46, s42, {mt*144*1024}", "s_nop 0"], f"buffer_load_dwordx4 {v(DBF+8*slot+4*mt,4)}, v6, s[28:31], s46 offen", tag, ["s_add_u32 s42, s42, 1024"] if mt == 1 else []) for mt in range(2)]
    def wreads(k):
        slot = k % WR; ab = AF + 8*(k % 2); L = []
        for nt in range(2):
            fr = ab + 4*nt; off = slot*2048
            L.append(f"ds_read_b64_tr_b16 {v(fr,2)}, v{12+nt} offset:{off}")
            L.append(f"ds_read_b64_tr_b16 {v(fr+2,2)}, v{12+nt} offset:{off+1024}")
        return L
    def dmf(k, first):
        ab = AF + 8*(k % 2); L = []
        for nt in range(2):
            for mt in range(2):
                D = ACC + 16*(nt*2+mt)
                L.append(f"v_mfma_f32_32x32x16_bf16 {v(D,16)}, {v(ab+4*nt,4)}, {v(DBF+8*(k % DR)+4*mt,4)}, {'0' if first else v(D,16)}")
        return L
    NH = 14
    for k in range(3):
        for g in issueW(k, 64, ("W", k)): emit4(g)
    A(f"""
    s_lshr_b32 s47, s3, 1
    s_and_b32 s48, s47, 1
    s_lshr_b32 s47, s47, 1
    s_and_b32 s50, s3, 1
    s_lshl_b32 s49, s37, 6
    s_lshl_b32 s53, s48, 5
    s_add_u32 s49, s49, s53
    s_lshl_b32 s49, s49, 10
    s_lshl_b32 s53, s36, 7
    s_add_u32 s49, s49, s53
    s_lshl_b32 s53, s47, 6
    s_add_u32 s49, s49, s53
    s_lshl_b32 s53, s50, 5
    s_add_u32 s49, s49, s53
    v_lshlrev_b32 v14, 10, v2
    v_add_u32 v14, s49, v14
    v_lshl_add_u32 v15, v3, 3, v14
    """)
    for j in range(2):
        V.op(f"buffer_load_dwordx2 {v(XR_+2*j,2)}, v15, s[16:19], 0 offen offset:{16*j}", "x")
    A(f"""s_lshr_b32 s49, s37, 1
    s_lshl_b32 s49, s49, 7
    s_add_u32 s49, s49, {FLG_H}""")
    poll(A, name, "s49", 14, need_epoch=True)
    A.stamp(4)
    for k in range(2):
        for g in issueB(k, ("B", k)): emit4(g)
    V.wait([("W", 0)])
    for x in wreads(0): A(x)
    for k in range(NH):
        items = [("B", k)] + ([("W", k+1)] if k + 1 < NH else [])
        V.wait(items, " lgkmcnt(0)")
        Rn = wreads(k+1) if k + 1 < NH else []
        Gi = (issueB(k+2, ("B", k+2)) if k + 2 < NH else []) + (issueW(k+3, 64, ("W", k+3)) if k + 3 < NH else [])
        M = dmf(k, k == 0)
        for i in range(4):
            A(M[i])
            if i < len(Rn): A(Rn[i])
            if i < len(Gi): emit4(Gi[i])
    A.stamp(5)
    A(f"""
    s_lshl_b32 s41, s3, 16
    s_lshl_b32 s42, s3, 12
    s_add_u32 s42, s42, s43
    s_waitcnt lgkmcnt(0)
    """)
    for k in range(4):
        for g in issueW(k, 32, ("W2", k)): emit4(g)
    A(f"""s_lshl_b32 s49, s37, 7
    s_add_u32 s49, s49, {FLG_O}""")
    poll(A, name, "s49", 8)
    A.stamp(6)
    for k in range(3):
        for g in issueB(k, ("B2", k)): emit4(g)
    V.wait([("W2", 0)])
    for x in wreads(0): A(x)
    for k in range(4):
        V.wait([("B2", k)] + ([("W2", k+1)] if k < 3 else []), " lgkmcnt(0)")
        Rn = wreads(k+1) if k < 3 else []
        M = dmf(k, False)
        for i in range(4):
            A(M[i])
            if i < len(Rn): A(Rn[i])
        if k == 0:
            for g in issueB(3, ("B2", 3)): emit4(g)
    A.nop(16)
    A("s_barrier")
    l1 = A.newlabel(name + "_r1"); l2 = A.newlabel(name + "_r2")
    A(f"""
    s_and_b32 s50, s3, 3
    s_lshl_b32 s50, s50, 14
    v_add_u32 v7, s50, v6
    s_cmp_lt_u32 s3, 4
    s_cbranch_scc1 {l1}
    """)
    for t in range(4):
        for qd in range(4):
            A(f"ds_write_b128 v7, {v(ACC+16*t+4*qd,4)} offset:{t*4096+qd*1024}")
    A.label(l1)
    A(f"""s_waitcnt lgkmcnt(0)
    s_barrier
    s_cmp_ge_u32 s3, 4
    s_cbranch_scc1 {l2}
    """)
    for half in range(2):
        for t in range(2):
            for qd in range(4):
                A(f"ds_read_b128 {v(80+16*t+4*qd,4)}, v7 offset:{(2*half+t)*4096+qd*1024}")
        A("s_waitcnt lgkmcnt(0)")
        for i in range(0, 32, 2):
            A(f"v_pk_add_f32 {v(ACC+32*half+i,2)}, {v(ACC+32*half+i,2)}, {v(80+i,2)}")
    for t in range(4):
        for qd in range(4):
            A(f"ds_write_b128 v7, {v(ACC+16*t+4*qd,4)} offset:{t*4096+qd*1024}")
    A.label(l2)
    A(f"""s_waitcnt lgkmcnt(0)
    s_barrier
    s_lshr_b32 s50, s3, 1
    s_lshl_b32 s50, s50, 12
    s_and_b32 s53, s3, 1
    s_lshl_b32 s53, s53, 11
    s_add_u32 s50, s50, s53
    v_add_u32 v7, s50, v6
    """)
    for ww in range(4):
        for qd in range(2):
            A(f"ds_read_b128 {v(ACC+8*ww+4*qd,4)}, v7 offset:{ww*16384+qd*1024}")
    for j in range(2):
        A(f"v_lshlrev_b32 v{80+4*j}, 16, v{XR_+2*j}")
        A(f"v_and_b32 v{81+4*j}, 0xffff0000, v{XR_+2*j}")
        A(f"v_lshlrev_b32 v{82+4*j}, 16, v{XR_+1+2*j}")
        A(f"v_and_b32 v{83+4*j}, 0xffff0000, v{XR_+1+2*j}")
    A("s_waitcnt lgkmcnt(0)")
    for i in range(0, 8, 2):
        A(f"v_pk_add_f32 {v(ACC+i,2)}, {v(ACC+i,2)}, {v(ACC+8+i,2)}")
        A(f"v_pk_add_f32 {v(ACC+16+i,2)}, {v(ACC+16+i,2)}, {v(ACC+24+i,2)}")
    for i in range(0, 8, 2):
        A(f"v_pk_add_f32 {v(ACC+i,2)}, {v(ACC+i,2)}, {v(80+i,2)}")
    for i in range(0, 8, 2):
        A(f"v_pk_add_f32 {v(ACC+i,2)}, {v(ACC+i,2)}, {v(ACC+16+i,2)}")
    for i in range(4):
        A(f"v_cvt_pk_bf16_f32 v{96+i}, v{ACC+2*i}, v{ACC+2*i+1}")
    A(f"""s_nop 1
    v_permlane32_swap_b32 v96, v98
    v_permlane32_swap_b32 v97, v99
    v_lshl_add_u32 v15, v3, 4, v14
    buffer_store_dwordx4 v[96:99], v15, s[20:23], 0 offen
    """)
    A.stamp_flush(2, 12, 13, 3, 1, 8, t0=20)

def build(path, stamps=False, **kw):
    HEADER = open("parallel_sum__grouped_kv_mqa__glu_gated_geglu__prompt.s.ref").read().split("; Override launch")[0]
    t, d = gen_mega(stamps=stamps, **kw)
    out = HEADER + "; @launch grid=(512,1,1) block=(512,1,1) lds=81920\n" + '.amdgcn_target "amdgcn-amd-amdhsa--gfx950"\n.text\n' + t + '.section .rodata,"a"\n.p2align 6\n' + d
    open(path, "w").write(out)
if __name__ == "__main__":
    build("m6.s"); build("m6s.s", stamps=True)
```

```python
from asmlib import *
import math, struct
from kgemm import VM
def f2u(x): return struct.unpack("<I", struct.pack("<f", x))[0]
WS_XN   = 0
WS_KV   = 2 << 20
WS_KMAX = WS_KV + (128 << 10)
WS_FLG  = 3 << 20
FLG_KVR = WS_FLG + 16384
FLG_KV, FLG_XN, FLG_H, FLG_O = WS_FLG, WS_FLG + 1024, WS_FLG + 4096, WS_FLG + 8192
WS_AT   = 6 << 20
AT_BYTES = 64 * 144 * 1024
SLOT = 16384
STG = 24576
EP = 68

def get_epoch(A, name):
    lab = A.newlabel(name + "_ep")
    A("v_mov_b32 v126, 0")
    A.label(lab)
    A(f"""
    global_load_dwordx2 v[124:125], v126, s[14:15] sc1
    s_waitcnt vmcnt(0)
    v_readfirstlane_b32 s{EP}, v124
    v_readfirstlane_b32 s{EP+1}, v125
    s_or_b32 s46, s{EP}, s{EP+1}
    s_cmp_eq_u32 s46, 0
    s_cbranch_scc1 {lab}
    """)

def epoch_async(A, name):
    done = A.newlabel(name + "_eed")
    A(f"""
    s_cmp_lg_u32 s3, 0
    s_cbranch_scc1 {done}
    v_mov_b32 v126, 0
    global_load_dwordx2 v[124:125], v126, s[14:15] sc1
    """)
    A.label(done)

def epoch_use(A, name):
    ok = A.newlabel(name + "_eok")
    A(f"""
    v_readfirstlane_b32 s{EP}, v124
    v_readfirstlane_b32 s{EP+1}, v125
    s_or_b32 s46, s{EP}, s{EP+1}
    s_cmp_lg_u32 s46, 0
    s_cbranch_scc1 {ok}
    """)
    get_epoch(A, name)
    A.label(ok)

def poll(A, name, off_s, n, need_epoch=False):
    lab = A.newlabel(name + "_poll"); done = A.newlabel(name + "_polled")
    A(f"""
    s_cmp_lg_u32 s3, 0
    s_cbranch_scc1 {done}
    """)
    if need_epoch: get_epoch(A, name)
    A(f"""
    v_lshlrev_b32 v4, 3, v1
    v_add_u32 v4, {off_s}, v4
    s_mov_b64 s[46:47], exec
    s_mov_b32 exec_lo, {hex(((1 << n) - 1) & 0xffffffff)}
    s_mov_b32 exec_hi, {hex(((1 << n) - 1) >> 32)}
    """)
    A.label(lab)
    A(f"""
    global_load_dwordx2 v[124:125], v4, s[12:13] sc1
    s_waitcnt vmcnt(0)
    v_cmp_ne_u64 vcc, s[{EP}:{EP+1}], v[124:125]
    s_cmp_eq_u64 vcc, 0
    s_cbranch_scc1 {lab}_ok
    s_sleep 2
    s_branch {lab}
    """)
    A.label(lab + "_ok")
    A("s_mov_b64 exec, s[46:47]")
    A.label(done)
    A("s_barrier")

def poll_kv(A, name, off_s, have_async=False):
    lab = A.newlabel(name + "_pollkv"); done = A.newlabel(name + "_polledkv")
    A(f"""
    s_cmp_lg_u32 s3, 0
    s_cbranch_scc1 {done}
    """)
    if have_async: epoch_use(A, name)
    else: get_epoch(A, name)
    A(f"""
    v_add_u32 v4, {off_s}, v6
    """)
    A.label(lab)
    A(f"""
    global_load_dwordx4 v[124:127], v4, s[12:13] sc1
    s_waitcnt vmcnt(0)
    v_cmp_ne_u64 vcc, s[{EP}:{EP+1}], v[124:125]
    v_cmp_ne_u64 s[46:47], s[{EP}:{EP+1}], v[126:127]
    s_or_b64 vcc, vcc, s[46:47]
    s_cmp_eq_u64 vcc, 0
    s_cbranch_scc1 {done}
    s_sleep 3
    s_branch {lab}
    """)
    A.label(done)
    A("s_barrier")

def signal(A, name, off_s, need_epoch=False):
    done = A.newlabel(name + "_sig")
    A(f"""
    s_waitcnt vmcnt(0)
    s_barrier
    s_cmp_lg_u32 s3, 0
    s_cbranch_scc1 {done}
    """)
    if need_epoch: get_epoch(A, name)
    A(f"""
    v_mov_b32 v4, {off_s}
    v_mov_b32 v124, s{EP}
    v_mov_b32 v125, s{EP+1}
    s_mov_b64 s[46:47], exec
    s_mov_b64 exec, 1
    global_store_dwordx2 v4, v[124:125], s[12:13] sc1
    s_mov_b64 exec, s[46:47]
    """)
    A.label(done)

def dpp_sum8(A, r):
    for ctrl in ("quad_perm:[1,0,3,2]", "quad_perm:[2,3,0,1]", "row_half_mirror"):
        A("s_nop 1")
        A(f"v_add_f32_dpp v{r}, v{r}, v{r} {ctrl} row_mask:0xf bank_mask:0xf")

def lane_reduce_max(A, vr, tmp_s0, out_s):
    for sh in (1,2,4,8):
        A("s_nop 1")
        A(f"v_max_f32_dpp v{vr}, v{vr}, v{vr} row_shr:{sh} row_mask:0xf bank_mask:0xf")
    A("s_nop 1")
    A(f"""v_readlane_b32 s{tmp_s0}, v{vr}, 15
    v_readlane_b32 s{tmp_s0+1}, v{vr}, 31
    v_readlane_b32 s{tmp_s0+2}, v{vr}, 47
    v_readlane_b32 s{tmp_s0+3}, v{vr}, 63
    s_nop 1
    v_mov_b32 v{vr}, s{tmp_s0}
    v_max_f32 v{vr}, s{tmp_s0+1}, v{vr}
    v_max_f32 v{vr}, s{tmp_s0+2}, v{vr}
    v_max_f32 v{vr}, s{tmp_s0+3}, v{vr}
    s_nop 0
    v_readfirstlane_b32 s{out_s}, v{vr}""")

S0, S1, O, C, P, Q, Kf, Vf = 16, 32, 48, 64, 80, 88, 92, 100
vKc, vKn, vVc, vVn, vKl, vVl = 116, 117, 118, 119, 120, 121

def att_stage(A, i):
    par = i % 2
    Sc, Sn = (S0, S1) if par == 0 else (S1, S0)
    kold, knxt = Kf + 4*par, Kf + 4*(1-par)
    vcur, vprev = Vf + 8*par, Vf + 8*(1-par)
    E = lambda k: A(f"v_exp_f32 v{Sc+k}, v{Sc+k}")
    Cv = lambda k: A(f"v_cvt_pk_bf16_f32 v{P+k}, v{Sc+2*k}, v{Sc+2*k+1}")
    M = lambda D, a_, b_, c_: A(f"v_mfma_f32_32x32x16_bf16 {v(D,16)}, {v(a_,4)}, {v(b_,4)}, {v(c_,16)}")
    E(0); E(1)
    M(O, vprev+4, P+4, O)
    for k in range(2,6): E(k)
    if i == 6:
        A("s_waitcnt vmcnt(0)")
        A("s_barrier")
        A.chunk_issue()
    A("s_waitcnt lgkmcnt(0)")
    M(Sn, knxt, Q, C)
    kt = i + 2
    A(f"ds_read_b128 {v(kold,4)}, v{vKc if kt < 8 else vKn} offset:{(kt % 8)*2048}")
    vt = i + 1
    va = vVc if vt < 8 else vVn
    A("s_mov_b64 exec, s[60:61]")
    A(f"ds_read_b128 {v(vprev,4)}, v{va} offset:{(vt % 8)*2048 + 1024}")
    A(f"ds_read_b128 {v(vprev+4,4)}, v{va} offset:{(vt % 8)*2048 + 1536}")
    A("s_mov_b64 exec, -1")
    E(6); E(7)
    for k in range(4): Cv(k)
    E(8); E(9)
    M(O, vcur, P, O)
    for k in range(10,16): E(k)
    for k in range(4,8): Cv(k)

def gen_mega(name="parallel_sum__grouped_kv_mqa__glu_gated_geglu__prompt_kernel", stamps=False, prio=2, lowprio=0):
    A = Asm(); A.stamps = stamps
    N = "m"
    A.raw(kernel_header(name).rstrip("\n"))
    A(f"""
    s_cmp_ge_u32 s2, 512
    s_cbranch_scc1 {N}_end
    s_xor_b32 s2, s2, 256
    """)
    A.stamp(0)
    A(f"""
    s_load_dwordx2 s[4:5], s[0:1], 0       ; x
    s_load_dwordx2 s[6:7], s[0:1], 8       ; wq
    s_load_dwordx4 s[8:11], s[0:1], 16
    s_load_dwordx4 s[12:15], s[0:1], 80
    v_and_b32 v1, 63, v0                   ; lane
    v_lshrrev_b32 v5, 6, v0                ; wave
    s_cmp_lt_u32 s2, 256
    v_readfirstlane_b32 s3, v5
    s_cselect_b32 s41, 3, 4
    s_cselect_b32 s42, 7, 15
    s_cselect_b32 s43, 7, 8
    s_cselect_b32 s44, 31, 63
    s_cselect_b32 s45, 16, 15
    s_cselect_b32 s46, 13, 12
    s_lshl_b32 s43, 1, s43
    s_and_b32 s37, s2, s44
    s_lshl_b32 s38, s37, s45
    s_lshl_b32 s39, s3, s46
    s_add_u32 s38, s38, s39
    v_lshrrev_b32 v4, s41, v1
    v_and_b32 v5, s42, v1                  ; c
    v_lshlrev_b32 v7, 10, v4
    v_lshl_add_u32 v7, v5, 4, v7
    s_mov_b32 s18, {2048*1024}
    s_mov_b32 s19, 0x00020000
    s_waitcnt lgkmcnt(0)
    s_mov_b32 s16, s4
    s_and_b32 s17, s5, 0xffff
    s_cmp_gt_u32 s2, 447
    s_cbranch_scc1 {N}_nox
    buffer_load_dwordx4 v[8:11], v7, s[16:19], s38 offen
    s_add_u32 s38, s38, s43
    buffer_load_dwordx4 v[12:15], v7, s[16:19], s38 offen
    s_add_u32 s38, s38, s43
    buffer_load_dwordx4 v[16:19], v7, s[16:19], s38 offen
    s_add_u32 s38, s38, s43
    buffer_load_dwordx4 v[20:23], v7, s[16:19], s38 offen
    s_add_u32 s38, s38, s43
    {N}_nox:
    v_and_b32 v2, 31, v0                   ; m
    v_bfe_u32 v3, v0, 5, 1                 ; h
    v_lshlrev_b32 v6, 4, v1                ; lane*16
    s_mov_b32 s46, s12
    s_mov_b32 s47, s13
    s_mov_b32 s12, s14
    s_mov_b32 s13, s15                     ; s[12:13] = ws
    s_mov_b32 s14, s46
    s_mov_b32 s15, s47                     ; s[14:15] = dbg
    s_cmp_lt_u32 s2, 256
    s_cbranch_scc1 {N}_att
    s_cmp_gt_u32 s2, 447
    s_cbranch_scc1 {N}_gsleep
    """)
    gen_kvx(A, N)
    A(f"s_branch {N}_gmain2")
    A.label(f"{N}_gsleep")
    A("s_sleep 64")
    A.label(f"{N}_gmain2")
    gen_g(A, N, prio, lowprio)
    A("s_endpgm")
    A.label(f"{N}_att")
    A("s_setprio 1")
    A("s_lshr_b32 s36, s2, 5                  ; hg")
    for j in range(4, 8):
        A(f"buffer_load_dwordx4 {v(8+4*j,4)}, v7, s[16:19], s38 offen offset:{(j-4)*128}")
    A(f"""
    s_and_b32 s38, s3, 1                   ; rh
    s_bfe_u32 s39, s3, 0x10001             ; hp
    s_lshr_b32 s40, s3, 2                  ; kh
    """)
    srd(A, 20, 6, 7, 512 * 1024)
    A(f"""
    v_bfe_u32 v40, v1, 2, 1                ; pos
    v_bfe_u32 v41, v1, 4, 1                ; (r8>>1)&1
    v_xor_b32 v40, v40, v41                ; q
    v_lshlrev_b32 v127, 6, v40
    v_and_b32 v40, 3, v1
    v_lshl_add_u32 v127, v40, 4, v127
    v_lshl_add_u32 v127, v4, 10, v127      ; + r8*1024   (v4 = l/8)
    s_lshl_b32 s41, s36, 7
    v_add_u32 v127, s41, v127
    s_lshl_b32 s42, s3, 16                 ; w*8*8*1024 global
    s_lshl_b32 s43, s3, 13                 ; w*8*1024 lds
    v_bfe_u32 v40, v1, 2, 2                ; r
    v_lshl_add_u32 v122, v3, 3, v40
    v_lshlrev_b32 v122, 7, v122
    v_lshrrev_b32 v40, 1, v40
    v_xor_b32 v40, s39, v40
    v_lshl_add_u32 v122, v40, 6, v122
    v_bfe_u32 v40, v1, 4, 1
    v_lshl_add_u32 v122, v40, 5, v122
    v_and_b32 v40, 3, v1
    v_lshl_add_u32 v122, v40, 3, v122
    s_lshl_b32 s41, s40, 15
    v_add_u32 v122, s41, v122
    v_mov_b32 v104, 0x3f803f80
    v_mov_b32 v105, 0
    v_mov_b32 v106, 0
    """)
    for j in range(8):
        A(f"""s_add_u32 m0, s43, {j*1024}
        s_add_u32 s41, s42, {j*8192}
        buffer_load_dwordx4 v127, s[20:23], s41 offen lds""")
    A("s_waitcnt vmcnt(8)")
    epoch_async(A, N)
    A.stamp(1)
    def wdma(j): return [f"s_add_u32 m0, s43, {j*1024}", f"s_add_u32 s41, s42, {j*8192}", "buffer_load_dwordx4 v127, s[20:23], s41 offen lds"]
    Amain = A
    A = Asm()
    for i in range(32):
        A(f"v_dot2c_f32_bf16 v{105 + (i%2)}, v{8+i}, v104")
    for i in range(32):
        A(f"v_lshlrev_b32 v{40+2*i}, 16, v{8+i}")
        A(f"v_and_b32 v{41+2*i}, 0xffff0000, v{8+i}")
    A("v_add_f32 v105, v105, v106")
    dpp_sum8(A, 105)
    A(f"""
    v_mul_f32 v107, 0x3b000000, v105       ; mean
    v_cvt_pk_bf16_f32 v108, v107, v107
    v_lshlrev_b32 v108, 16, v108           ; m_b
    v_sub_f32 v110, 0, v108
    v_sub_f32 v107, v107, v108             ; delta
    v_mov_b32 v112, 0
    v_mov_b32 v113, 0
    """)
    for i in range(32):
        A(f"v_pk_add_f32 {v(40+2*i,2)}, {v(40+2*i,2)}, v[110:111] op_sel_hi:[1,0]")
    for i in range(32):
        A(f"v_pk_fma_f32 v[112:113], {v(40+2*i,2)}, {v(40+2*i,2)}, v[112:113]")
    A("v_add_f32 v112, v112, v113")
    dpp_sum8(A, 112)
    A(f"""
    v_mul_f32 v112, 0x3b000000, v112
    v_fma_f32 v112, -v107, v107, v112
    v_max_f32 v112, 0, v112
    v_cvt_pk_bf16_f32 v112, v112, v112
    v_lshlrev_b32 v112, 16, v112
    v_add_f32 v112, 0x3727c5ac, v112
    v_cvt_pk_bf16_f32 v112, v112, v112
    v_lshlrev_b32 v112, 16, v112
    v_sqrt_f32 v112, v112
    s_nop 0
    v_cvt_pk_bf16_f32 v112, v112, v112
    v_lshlrev_b32 v112, 16, v112
    v_rcp_f32 v110, v112
    """)
    for i in range(32):
        A(f"v_cvt_pk_bf16_f32 v{8+i}, v{40+2*i}, v{41+2*i}")
    for i in range(32):
        A(f"v_lshlrev_b32 v{40+2*i}, 16, v{8+i}")
        A(f"v_and_b32 v{41+2*i}, 0xffff0000, v{8+i}")
    for i in range(32):
        A(f"v_pk_mul_f32 {v(40+2*i,2)}, {v(40+2*i,2)}, v[110:111] op_sel_hi:[1,0]")
    for i in range(32):
        A(f"v_cvt_pk_bf16_f32 v{8+i}, v{40+2*i}, v{41+2*i}")
    ln = A.lines
    A = Amain
    interleave(A, ln, [], start=0, every=12)
    A.stamp(2)
    A(f"""
    s_waitcnt vmcnt(0)
    s_barrier
    """)
    for st in range(16):
        A(f"ds_read_b64_tr_b16 {v(40+4*st,2)}, v122 offset:{st*2048}")
        A(f"ds_read_b64_tr_b16 {v(42+4*st,2)}, v122 offset:{st*2048+512}")
    A(f"""
    s_and_b32 s41, s3, 3
    s_lshl_b32 s41, s41, 3
    v_add_u32 v4, s41, v4                  ; m
    v_xor_b32 v4, v4, v5
    v_lshlrev_b32 v4, 4, v4
    v_lshrrev_b32 v7, 1, v5
    v_lshl_add_u32 v4, v7, 10, v4
    v_and_b32 v7, 1, v5
    v_lshl_add_u32 v4, v7, 9, v4
    s_lshl_b32 s41, s40, 15                ; (w/4)*32768
    v_add_u32 v4, s41, v4
    v_xor_b32 v7, v2, v3
    v_lshlrev_b32 v7, 4, v7
    v_lshl_add_u32 v7, v3, 9, v7
    s_lshl_b32 s41, s38, 15
    s_lshl_b32 s42, s40, 14
    s_add_u32 s41, s41, s42
    v_add_u32 v120, s41, v7
    v_xor_b32 v121, 32, v120
    v_xor_b32 v122, 64, v120
    v_xor_b32 v123, 96, v120
    s_waitcnt lgkmcnt(0)
    s_barrier
    """)
    for j in range(8):
        A(f"ds_write_b128 v4, {v(8+4*j,4)} offset:{j*4096}")
    A("s_waitcnt lgkmcnt(0)")
    A("s_barrier")
    A.stamp(3)
    QD = 104
    A.label(f"{N}_qproj")
    def brd(st): A(f"ds_read_b128 {v(8+4*(st%4),4)}, v{120 + st%4} offset:{st*1024}")
    brd(0); brd(1); brd(2)
    for st in range(16):
        if st + 3 < 16:
            brd(st+3); A("s_waitcnt lgkmcnt(3)")
        else:
            A(f"s_waitcnt lgkmcnt({15-st})")
        c_ = "0" if st == 0 else v(QD,16)
        A(f"v_mfma_f32_32x32x16_bf16 {v(QD,16)}, {v(40+4*st,4)}, {v(8+4*(st%4),4)}, {c_}")
    A(f"""
    s_barrier
    """)
    A(f"""
    s_lshl_b32 s41, s3, 11
    s_add_u32 s41, s41, 65536
    v_add_u32 v7, s41, v6
    s_xor_b32 s41, s41, 8192
    v_add_u32 v4, s41, v6
    s_cmp_eq_u32 s40, 0
    s_cbranch_scc1 {N}_nosw
    """)
    for i in range(8): A(f"v_swap_b32 v{QD+i}, v{QD+8+i}")
    A.label(f"{N}_nosw")
    A(f"""
    ds_write_b128 v7, {v(QD+8,4)}
    ds_write_b128 v7, {v(QD+12,4)} offset:1024
    s_waitcnt lgkmcnt(0)
    s_barrier
    ds_read_b128 {v(40,4)}, v4
    ds_read_b128 {v(44,4)}, v4 offset:1024
    s_waitcnt lgkmcnt(0)
    """)
    for i in range(8): A(f"v_add_f32 v{QD+i}, v{QD+i}, v{40+i}")
    A.stamp(4)
    cq = 0.25 * math.log2(math.e)
    A(f"s_mov_b32 s41, {f2u(cq)}")
    for i in range(8): A(f"v_mul_f32 v{QD+i}, s41, v{QD+i}")
    for i in range(4): A(f"v_cvt_pk_bf16_f32 v{Q+i}, v{QD+2*i}, v{QD+2*i+1}")
    srd_off(A, 24, 12, 13, WS_KV, (128 << 10) + 256)
    srd_off(A, 28, 12, 13, WS_AT, AT_BYTES)
    A(f"""
    s_lshl_b32 s39, s39, 1
    s_add_u32 s39, s39, s40
    s_lshl_b32 s40, s3, 11
    s_mov_b32 s60, 0x0000ffff
    s_mov_b32 s61, 0x0000ffff
    v_mov_b32 v{vKl}, v6
    v_and_b32 v11, 15, v1
    v_lshlrev_b32 v11, 4, v11
    v_lshl_add_u32 v{vVl}, v3, 8, v11
    v_mov_b32 v15, 0x3f803f80
    v_cmp_eq_u32 vcc, 16, v2
    s_mov_b32 s50, 0                       ; cur slot offset (chunk c -> slot c%5)
    s_mov_b32 s51, {SLOT}
    s_mov_b32 s52, 0
    v_mov_b32 v13, 0
    """)
    for i in range(16): A(f"v_cndmask_b32 v{Vf+i}, 0, v15, vcc")
    for i in range(4): A(f"v_dot2c_f32_bf16 v13, v{Q+i}, v{Q+i}")
    for i in range(16): A(f"v_mov_b32 v{O+i}, 0")
    for i in range(8): A(f"v_mov_b32 v{P+i}, 0")
    A(f"""
    v_add_u32 v{vKc}, s50, v{vKl}
    v_add_u32 v{vVc}, s50, v{vVl}
    v_add_u32 v{vKn}, s51, v{vKl}
    v_add_u32 v{vVn}, s51, v{vVl}
    v_mov_b32 v15, v13
    s_and_b32 s49, s2, 7
    s_lshl_b32 s49, s49, 10
    s_add_u32 s49, s49, {FLG_KVR}
    """)
    A("s_nop 1")
    A(f"v_permlane32_swap_b32 v13, v15")
    A(f"v_add_f32 v13, v13, v15")
    poll_kv(A, N, "s49", have_async=True)
    A.stamp(5)
    def chunk_load(lds_s, glob_s):
        for j in range(2):
            A(f"""s_add_u32 m0, {lds_s[0]}, {lds_s[1] + j*1024}
            s_add_u32 s41, {glob_s[0]}, {glob_s[1] + j*1024}
            buffer_load_dwordx4 v6, s[24:27], s41 offen lds""")
    chunk_load(("s40", 0), ("s40", 0))
    A(f"""
    v_lshlrev_b32 v7, 2, v1
    s_mov_b32 s41, {128<<10}
    buffer_load_dword v8, v7, s[24:27], s41 offen
    """)
    for cch in range(1, 5): chunk_load(("s40", cch*SLOT), ("s40", cch*SLOT))
    A("s_waitcnt vmcnt(8)")
    A("s_barrier")
    A(f"""
    ds_read_b128 {v(Kf,4)}, v{vKc} offset:0
    ds_read_b128 {v(Kf+4,4)}, v{vKc} offset:2048
    s_mov_b64 exec, s[60:61]
    ds_read_b128 {v(Vf,4)}, v{vVc} offset:1024
    ds_read_b128 {v(Vf+4,4)}, v{vVc} offset:1536
    s_mov_b64 exec, -1
    """)
    lane_reduce_max(A, 8, 44, 62)
    A(f"""
    v_mul_f32 v13, s62, v13
    v_sqrt_f32 v13, v13
    s_nop 0
    v_mul_f32 v13, 0x3f828f5c, v13
    v_cmp_lt_f32 vcc, 0x42200000, v13
    s_cmp_lg_u64 vcc, 0
    s_cbranch_scc0 {N}_fast
    v_mov_b32 v13, 0xff800000
    s_mov_b32 s41, 0
    """)
    A.label(f"{N}_slow")
    A(f"""
    buffer_load_dwordx4 {v(P,4)}, v6, s[24:27], s41 offen
    s_waitcnt vmcnt(0)
    v_mfma_f32_32x32x16_bf16 {v(S0,16)}, {v(P,4)}, {v(Q,4)}, 0
    s_nop 15
    s_nop 7
    """)
    for i in range(8): A(f"v_max3_f32 v13, v{S0+2*i}, v{S0+2*i+1}, v13")
    A(f"""
    s_add_u32 s41, s41, 2048
    s_cmp_lt_u32 s41, {128<<10}
    s_cbranch_scc1 {N}_slow
    v_mov_b32 v15, v13
    s_nop 1
    v_permlane32_swap_b32 v13, v15
    v_max_f32 v13, v13, v15
    """)
    for i in range(4): A(f"v_mov_b32 v{P+i}, 0")
    A.label(f"{N}_fast")
    for i in range(16): A(f"v_sub_f32 v{C+i}, 0, v13")
    A(f"""
    s_waitcnt lgkmcnt(0)
    v_mfma_f32_32x32x16_bf16 {v(S0,16)}, {v(Kf,4)}, {v(Q,4)}, {v(C,16)}
    s_nop 15
    """)
    def chunk_issue():
        lab = A.newlabel(f"{N}_noissue")
        A(f"""
        s_add_u32 s53, s52, -1
        s_cmp_gt_u32 s53, 2
        s_cbranch_scc1 {lab}
        s_lshl_b32 s54, s53, 14
        s_add_u32 s54, s54, s40
        s_add_u32 s55, s52, 4
        s_lshl_b32 s55, s55, 14
        s_add_u32 s55, s55, s40
        """)
        chunk_load(("s54", 0), ("s55", 0))
        A.label(lab)
    A.chunk_issue = chunk_issue
    A.stamp(6)
    A.raw(".p2align 6")
    A.label(f"{N}_loop")
    for i in range(8): att_stage(A, i)
    A(f"""
    s_mov_b32 s50, s51
    s_add_u32 s51, s51, {SLOT}
    s_cmp_ge_u32 s51, {5*SLOT}
    s_cselect_b32 s51, 0, s51
    v_mov_b32 v{vKc}, v{vKn}
    v_mov_b32 v{vVc}, v{vVn}
    v_add_u32 v{vKn}, s51, v{vKl}
    v_add_u32 v{vVn}, s51, v{vVl}
    s_add_u32 s52, s52, 1
    s_cmp_lt_u32 s52, 8
    s_cbranch_scc1 {N}_loop
    """)
    A(f"v_mfma_f32_32x32x16_bf16 {v(O,16)}, {v(Vf+8+4,4)}, {v(P+4,4)}, {v(O,16)}")
    A(f"""
    s_lshl_b32 s41, s37, 1
    s_add_u32 s41, s41, s38
    s_mul_i32 s41, s41, {144*1024}
    s_lshl_b32 s42, s36, 12
    s_lshl_b32 s43, s39, 10
    s_add_u32 s41, s41, s42
    s_add_u32 s41, s41, s43
    s_nop 15
    v_mov_b32 v14, v{O+8}
    v_mov_b32 v15, v{O+8}
    s_nop 1
    v_permlane32_swap_b32 v15, v14
    v_rcp_f32 v15, v15
    s_nop 0
    """)
    for i in range(8): A(f"v_mul_f32 v{O+i}, v{O+i}, v15")
    for i in range(4): A(f"v_cvt_pk_bf16_f32 v{P+i}, v{O+2*i}, v{O+2*i+1}")
    A(f"buffer_store_dwordx4 {v(P,4)}, v6, s[28:31], s41 offen sc1")
    A(f"""s_lshl_b32 s49, s37, 7
    s_lshl_b32 s41, s36, 3
    s_add_u32 s49, s49, s41
    s_add_u32 s49, s49, {FLG_O}""")
    signal(A, N, "s49")
    A.stamp_flush(1, 12, 13, 3, 1, 8)
    A("s_endpgm")
    A.label(f"{N}_end")
    A("s_endpgm")
    return A.text(), kernel_desc(name, 128, 100)


def gen_kvx(A, N):
    A("s_setprio 3")
    A(f"""
    s_xor_b32 s46, s2, 256
    s_or_b32 s46, s46, s3
    s_cmp_lg_u32 s46, 0
    s_cbranch_scc1 {N}_noep
    s_memrealtime s[46:47]
    v_mov_b32 v40, 0
    s_waitcnt lgkmcnt(0)
    v_mov_b32 v42, s46
    v_mov_b32 v43, s47
    s_mov_b64 exec, 1
    global_store_dwordx2 v40, v[42:43], s[14:15] sc1
    s_mov_b64 exec, -1
    {N}_noep:
    s_sub_u32 s36, s2, 256
    s_lshr_b32 s36, s36, 6
    """)
    A(f"""
    s_cmp_eq_u32 s36, 1
    s_cselect_b32 s24, s10, s8
    s_cselect_b32 s25, s11, s9
    s_and_b32 s25, s25, 0xffff
    s_mov_b32 s26, {512*32}
    s_mov_b32 s27, 0x00020000
    s_lshl_b32 s43, s3, 11
    s_add_u32 m0, s43, 32768
    s_add_u32 s41, s43, 1024
    buffer_load_dwordx4 v6, s[24:27], s43 offen lds
    s_add_u32 m0, s43, {32768+1024}
    s_nop 0
    buffer_load_dwordx4 v6, s[24:27], s41 offen lds
    ; X write addr: piece j: s = 8j + c16/2, h' = c16%2, m' = (4w + r4) ^ (c16%8)
    s_lshl_b32 s41, s3, 2
    v_add_u32 v40, s41, v4
    v_and_b32 v41, 7, v5
    v_xor_b32 v40, v40, v41
    v_lshlrev_b32 v40, 4, v40
    v_lshrrev_b32 v41, 1, v5
    v_lshl_add_u32 v40, v41, 10, v40
    v_and_b32 v41, 1, v5
    v_lshl_add_u32 v60, v41, 9, v40
    v_xor_b32 v40, v2, v3
    v_lshlrev_b32 v40, 4, v40
    v_lshl_add_u32 v40, v3, 9, v40
    s_lshl_b32 s41, s3, 12
    v_add_u32 v61, s41, v40
    v_xor_b32 v62, 32, v61
    v_xor_b32 v63, 64, v61
    v_xor_b32 v64, 96, v61
    v_bfe_u32 v40, v1, 2, 2
    v_lshl_add_u32 v40, v3, 3, v40
    v_lshlrev_b32 v40, 5, v40
    v_and_b32 v41, 3, v1
    v_lshl_add_u32 v40, v41, 3, v40
    s_lshl_b32 s41, s3, 11
    s_add_u32 s41, s41, 32768
    v_add_u32 v65, s41, v40
    v_mov_b32 v56, 0x3f803f80
    v_mov_b32 v57, 0
    """)
    A("s_waitcnt vmcnt(2)")
    epoch_async(A, N)
    def sum16(r):
        for ctrl in ("quad_perm:[1,0,3,2]", "quad_perm:[2,3,0,1]", "row_half_mirror", "row_mirror"):
            A("s_nop 1")
            A(f"v_add_f32_dpp v{r}, v{r}, v{r} {ctrl} row_mask:0xf bank_mask:0xf")
    for i in range(16): A(f"v_dot2c_f32_bf16 v57, v{8+i}, v56")
    for i in range(16):
        A(f"v_lshlrev_b32 v{24+2*i}, 16, v{8+i}")
        A(f"v_and_b32 v{25+2*i}, 0xffff0000, v{8+i}")
    sum16(57)
    A(f"""
    v_mul_f32 v57, 0x3b000000, v57
    v_cvt_pk_bf16_f32 v58, v57, v57
    v_lshlrev_b32 v58, 16, v58
    v_sub_f32 v66, 0, v58
    v_sub_f32 v57, v57, v58
    v_mov_b32 v68, 0
    v_mov_b32 v69, 0
    """)
    for i in range(16): A(f"v_pk_add_f32 {v(24+2*i,2)}, {v(24+2*i,2)}, v[66:67] op_sel_hi:[1,0]")
    for i in range(16): A(f"v_pk_fma_f32 v[68:69], {v(24+2*i,2)}, {v(24+2*i,2)}, v[68:69]")
    A("v_add_f32 v68, v68, v69")
    sum16(68)
    A(f"""
    v_mul_f32 v68, 0x3b000000, v68
    v_fma_f32 v68, -v57, v57, v68
    v_max_f32 v68, 0, v68
    v_cvt_pk_bf16_f32 v68, v68, v68
    v_lshlrev_b32 v68, 16, v68
    v_add_f32 v68, 0x3727c5ac, v68
    v_cvt_pk_bf16_f32 v68, v68, v68
    v_lshlrev_b32 v68, 16, v68
    v_sqrt_f32 v68, v68
    s_nop 0
    v_cvt_pk_bf16_f32 v68, v68, v68
    v_lshlrev_b32 v68, 16, v68
    v_rcp_f32 v66, v68
    """)
    for i in range(16): A(f"v_cvt_pk_bf16_f32 v{8+i}, v{24+2*i}, v{25+2*i}")
    for i in range(16):
        A(f"v_lshlrev_b32 v{24+2*i}, 16, v{8+i}")
        A(f"v_and_b32 v{25+2*i}, 0xffff0000, v{8+i}")
    for i in range(16): A(f"v_pk_mul_f32 {v(24+2*i,2)}, {v(24+2*i,2)}, v[66:67] op_sel_hi:[1,0]")
    for i in range(16): A(f"v_cvt_pk_bf16_f32 v{8+i}, v{24+2*i}, v{25+2*i}")
    for j in range(4): A(f"ds_write_b128 v60, {v(8+4*j,4)} offset:{j*8192}")
    A("s_waitcnt vmcnt(0) lgkmcnt(0)")
    A("s_barrier")
    for st in range(4):
        A(f"ds_read_b128 {v(8+4*st,4)}, v{61+st} offset:{st*1024}")
    A(f"""
    s_cmp_lg_u32 s36, 2
    s_cbranch_scc1 {N}_kvp
    """)
    srd_off(A, 16, 12, 13, WS_XN, 2048 * 1024)
    A(f"""
    s_lshl_b32 s41, s37, 15
    s_lshl_b32 s42, s3, 12
    s_add_u32 s41, s41, s42
    s_waitcnt lgkmcnt(0)
    """)
    for st in range(4):
        A(f"buffer_store_dwordx4 {v(8+4*st,4)}, v6, s[16:19], s41 offen offset:{st*1024} sc1")
    A(f"s_branch {N}_xsig")
    A.label(f"{N}_kvp")
    for st in range(4):
        A(f"ds_read_b64_tr_b16 {v(24+4*st,2)}, v65 offset:{st*512}")
        A(f"ds_read_b64_tr_b16 {v(26+4*st,2)}, v65 offset:{st*512+128}")
    KD = 40
    srd_off(A, 24, 12, 13, WS_KV, (128 << 10) + 256)
    A(f"""
    s_lshl_b32 s41, s3, 11
    s_add_u32 s41, s41, 49152
    v_add_u32 v4, s41, v6
    v_lshlrev_b32 v5, 4, v2
    v_lshl_add_u32 v5, v3, 8, v5           ; (h*16+m)*16
    v_add_u32 v7, s41, v5
    v_cmp_gt_u32 vcc, 16, v2
    s_mov_b64 s[50:51], vcc
    s_cmp_eq_u32 s36, 1
    s_cbranch_scc1 {N}_xv
    """)
    for st in range(4):
        A(f"s_waitcnt lgkmcnt({2*(3-st)})")
        A(f"v_mfma_f32_32x32x16_bf16 {v(KD,16)}, {v(24+4*st,4)}, {v(8+4*st,4)}, {'0' if st == 0 else v(KD,16)}")
    A(f"""
    s_nop 15
    ds_write_b128 v4, {v(KD,4)}
    ds_write_b128 v4, {v(KD+4,4)} offset:1024
    s_waitcnt lgkmcnt(0)
    s_barrier
    s_cmp_lg_u32 s3, 0
    s_cbranch_scc1 {N}_xsig
    """)
    for ww in range(8):
        A(f"ds_read_b128 {v(8+8*ww,4)}, v4 offset:{ww*2048}")
        A(f"ds_read_b128 {v(12+8*ww,4)}, v4 offset:{ww*2048+1024}")
    A("s_waitcnt lgkmcnt(0)")
    for i in range(0, 8, 2):
        for a_, b_ in ((8, 16), (24, 32), (40, 48), (56, 64)): A(f"v_pk_add_f32 {v(a_+i,2)}, {v(a_+i,2)}, {v(b_+i,2)}")
    for i in range(0, 8, 2):
        A(f"v_pk_add_f32 {v(8+i,2)}, {v(8+i,2)}, {v(24+i,2)}")
        A(f"v_pk_add_f32 {v(40+i,2)}, {v(40+i,2)}, {v(56+i,2)}")
    for i in range(0, 8, 2): A(f"v_pk_add_f32 {v(8+i,2)}, {v(8+i,2)}, {v(40+i,2)}")
    for i in range(4): A(f"v_cvt_pk_bf16_f32 v{16+i}, v{8+2*i}, v{9+2*i}")
    A(f"""
    s_lshl_b32 s42, s37, 11
    buffer_store_dwordx4 v[16:19], v6, s[24:27], s42 offen sc1
    v_mul_f32 v20, v8, v8
    """)
    for i in range(1, 8): A(f"v_fmac_f32 v20, v{8+i}, v{8+i}")
    A(f"""
    v_mov_b32 v21, v20
    s_nop 1
    v_permlane32_swap_b32 v20, v21
    v_add_f32 v20, v20, v21
    """)
    lane_reduce_max(A, 20, 44, 43)
    A(f"""
    s_lshl_b32 s44, s37, 2
    s_add_u32 s44, s44, {128<<10}
    v_mov_b32 v21, s43
    v_mov_b32 v22, 0
    s_mov_b64 exec, 1
    buffer_store_dword v21, v22, s[24:27], s44 offen sc1
    s_mov_b64 exec, -1
    s_branch {N}_xsig
    """)
    A.label(f"{N}_xv")
    for st in range(4):
        A(f"s_waitcnt lgkmcnt({2*(3-st)})")
        A(f"v_mfma_f32_32x32x16_bf16 {v(KD,16)}, {v(8+4*st,4)}, {v(24+4*st,4)}, {'0' if st == 0 else v(KD,16)}")
    A("s_nop 7")
    A("s_nop 7")
    A("s_mov_b64 exec, s[50:51]")
    for qd in range(4): A(f"ds_write_b128 v7, {v(KD+4*qd,4)} offset:{qd*512}")
    A(f"""
    s_mov_b64 exec, -1
    s_waitcnt lgkmcnt(0)
    s_barrier
    s_cmp_gt_u32 s3, 1
    s_cbranch_scc1 {N}_xsig
    s_lshl_b32 s41, s3, 10                 ; j*1024
    s_add_u32 s41, s41, 49152
    v_add_u32 v7, s41, v5
    s_mov_b64 exec, s[50:51]
    """)
    for ww in range(8):
        A(f"ds_read_b128 {v(8+8*ww,4)}, v7 offset:{ww*2048}")
        A(f"ds_read_b128 {v(12+8*ww,4)}, v7 offset:{ww*2048+512}")
    A("s_waitcnt lgkmcnt(0)")
    for i in range(0, 8, 2):
        for a_, b_ in ((8, 16), (24, 32), (40, 48), (56, 64)): A(f"v_pk_add_f32 {v(a_+i,2)}, {v(a_+i,2)}, {v(b_+i,2)}")
    for i in range(0, 8, 2):
        A(f"v_pk_add_f32 {v(8+i,2)}, {v(8+i,2)}, {v(24+i,2)}")
        A(f"v_pk_add_f32 {v(40+i,2)}, {v(40+i,2)}, {v(56+i,2)}")
    for i in range(0, 8, 2): A(f"v_pk_add_f32 {v(8+i,2)}, {v(8+i,2)}, {v(40+i,2)}")
    for i in range(4): A(f"v_cvt_pk_bf16_f32 v{16+i}, v{8+2*i}, v{9+2*i}")
    A(f"""
    s_lshl_b32 s41, s37, 11
    s_lshl_b32 s42, s3, 9
    s_add_u32 s41, s41, s42
    s_add_u32 s41, s41, 1024
    buffer_store_dwordx4 v[16:19], v5, s[24:27], s41 offen sc1
    s_mov_b64 exec, -1
    """)
    A.label(f"{N}_xsig")
    done = A.newlabel("xsig")
    A(f"""
    s_waitcnt vmcnt(0)
    s_barrier
    s_cmp_lg_u32 s3, 0
    s_cbranch_scc1 {done}
    """)
    epoch_use(A, N)
    A(f"""
    s_lshl_b32 s41, s37, 4
    s_lshl_b32 s42, s36, 3
    s_add_u32 s41, s41, s42
    s_add_u32 s41, s41, {FLG_KVR}
    s_lshr_b32 s42, s37, 2
    s_lshl_b32 s42, s42, 7
    s_and_b32 s43, s37, 3
    s_lshl_b32 s43, s43, 3
    s_add_u32 s42, s42, s43
    s_add_u32 s42, s42, {FLG_XN}
    s_cmp_eq_u32 s36, 2
    s_cselect_b32 s41, s42, s41
    s_cselect_b32 s42, 1, 0xff
    v_lshlrev_b32 v5, 10, v1
    v_add_u32 v5, s41, v5
    v_mov_b32 v124, s{EP}
    v_mov_b32 v125, s{EP+1}
    s_mov_b32 exec_lo, s42
    s_mov_b32 exec_hi, 0
    global_store_dwordx2 v5, v[124:125], s[12:13] sc1
    s_mov_b64 exec, -1
    """)
    A.label(done)

ACC, AF, BF, DBF, XR_, TD, TB_ = 16, 80, 96, 96, 120, 124, 126
DR = 3
def gen_g(A, name, prio, lowprio):
    V = VM(A)
    A(f"""
    s_setprio {lowprio}
    s_sub_u32 s2, s2, 256
    s_load_dwordx4 s[4:7], s[0:1], 48
    s_load_dwordx4 s[8:11], s[0:1], 64
    s_load_dwordx2 s[56:57], s[0:1], 0     ; x
    s_load_dwordx2 s[58:59], s[0:1], 32    ; wo
    v_lshlrev_b32 v{TB_}, 7, v1            ; lane*128
    s_and_b32 s61, s2, 31
    s_lshr_b32 s60, s2, 5                  ; nb
    s_waitcnt lgkmcnt(0)
    """)
    srd_off(A, 28, 12, 13, WS_AT, AT_BYTES)
    srd(A, 64, 8, 9, 1792 * 1024)
    srd(A, 32, 58, 59, 512 * 1024)
    A(f"""
    s_cmp_ge_u32 s2, 224
    s_cbranch_scc1 {name}_down
    s_mov_b32 s53, s2
    """)
    A(f"""
    s_and_b32 s36, s53, 7
    s_lshr_b32 s37, s53, 3
    s_and_b32 s38, s36, 3
    s_lshl_b32 s38, s38, 2
    s_and_b32 s39, s37, 3
    s_add_u32 s38, s38, s39                ; mb
    s_lshr_b32 s39, s36, 2
    s_mul_i32 s39, s39, 7
    s_lshr_b32 s37, s37, 2
    s_add_u32 s39, s39, s37                ; fb
    s_and_b32 s36, s3, 1                   ; wm
    s_lshr_b32 s37, s3, 1                  ; wf 0..3
    """)
    srd(A, 16, 4, 5, 512 * 3584)
    srd(A, 20, 6, 7, 512 * 3584)
    srd_off(A, 24, 12, 13, WS_XN, 2048 * 1024)
    A(f"""
    v_lshrrev_b32 v7, 4, v1
    v_bfe_u32 v8, v1, 2, 2
    v_xor_b32 v8, v8, v7
    s_mov_b32 s40, 3584
    v_mul_lo_u32 v7, v7, s40
    v_lshl_add_u32 v7, v8, 6, v7
    v_and_b32 v8, 3, v1
    v_lshl_add_u32 v7, v8, 4, v7
    s_lshl_b32 s41, s38, 2
    s_add_u32 s41, s41, s37
    s_lshl_b32 s41, s41, 15
    s_lshl_b32 s42, s36, 10
    s_add_u32 s41, s41, s42
    s_mul_i32 s42, s3, {4*3584}
    s_lshl_b32 s43, s39, 8
    s_add_u32 s42, s42, s43
    s_lshl_b32 s44, s3, 10
    """)
    def gX(slot, st): return ([f"s_add_u32 m0, s44, {slot}"], "buffer_load_dwordx4 v6, s[24:27], s41 offen lds", ("S", st), ["s_add_u32 s41, s41, 2048"])
    def gW(slot, st): return [
          ([f"s_add_u32 m0, s44, {slot + 8192}"], "buffer_load_dwordx4 v7, s[16:19], s42 offen lds", ("S", st), []),
          ([f"s_add_u32 m0, s44, {slot + 16384}"], "buffer_load_dwordx4 v7, s[20:23], s42 offen lds", ("S", st), [f"s_add_u32 s42, s42, {32*3584}"])]
    def emit4(g):
        for x in g[0]: A(x)
        if len(g[0]) == 1: A("s_nop 0")
        V.op(g[1], g[2])
        for x in g[3]: A(x)
    for sl in range(3):
        for g in gW(sl*STG, sl): emit4(g)
    A(f"""
    v_bfe_u32 v8, v1, 2, 2
    v_lshl_add_u32 v9, v3, 3, v8
    v_lshlrev_b32 v9, 8, v9
    v_bfe_u32 v10, v1, 4, 1
    v_lshl_add_u32 v9, v10, 5, v9
    v_and_b32 v10, 3, v1
    v_lshl_add_u32 v9, v10, 3, v9
    v_add_u32 v9, 8192, v9
    v_xor_b32 v10, s37, v8
    v_lshl_add_u32 v10, v10, 6, v9         ; A addr
    s_lshl_b32 s46, s36, 12
    v_add_u32 v12, s46, v6                 ; B addr
    s_lshl_b32 s49, s38, 7
    s_add_u32 s49, s49, {FLG_XN}
    """)
    poll(A, name, "s49", 4, need_epoch=True)
    for sl in range(3): emit4(gX(sl*STG, sl))
    def acc(gu, mt): return ACC + 16*(gu*2 + mt)
    def reads(ks, slot):
        L = []
        for mt in range(2):
            L.append(f"ds_read_b128 {v(BF+8*ks+4*mt,4)}, v12 offset:{slot*STG + mt*2048 + ks*1024}")
        for gu in range(2):
            fr = AF + 8*ks + 4*gu
            off = slot*STG + gu*8192 + ks*4096
            L.append(f"ds_read_b64_tr_b16 {v(fr,2)}, v10 offset:{off}")
            L.append(f"ds_read_b64_tr_b16 {v(fr+2,2)}, v10 offset:{off+1024}")
        return L
    def mf(ks, first):
        return [f"v_mfma_f32_32x32x16_bf16 {v(acc(gu,mt),16)}, {v(AF+8*ks+4*gu,4)}, {v(BF+8*ks+4*mt,4)}, {'0' if first else v(acc(gu,mt),16)}"
                for gu in range(2) for mt in range(2)]
    V.wait([("S", 0)])
    A("s_barrier")
    for x in reads(0, 0): A(x)
    A.stamp(1)
    for st in range(16):
        slot = st % 3
        A("s_waitcnt lgkmcnt(0)")
        R1 = reads(1, slot); m0 = mf(0, st == 0)
        ri = 0
        for i in range(4):
            A(m0[i])
            for _ in range(2 if i < 2 else 1):
                if ri < len(R1): A(R1[ri]); ri += 1
        if st < 15:
            V.wait([("S", st+1)], " lgkmcnt(0)")
            A("s_barrier")
        else:
            A("s_waitcnt lgkmcnt(0)")
        G = ([gX(slot*STG, st+3)] + gW(slot*STG, st+3)) if st + 3 < 16 else []
        m1 = mf(1, False); R0 = reads(0, (st+1) % 3) if st < 15 else []
        ri = 0
        for i in range(4):
            A(m1[i])
            for _ in range(2 if i < 2 else 1):
                if ri < len(R0): A(R0[ri]); ri += 1
            if i < len(G): emit4(G[i])
    A(f"s_setprio {prio}")
    A.nop(16)
    A.stamp(2)
    c0 = -2.0 * math.log2(math.e) * math.sqrt(2.0 / math.pi)
    c1 = c0 * 0.044715
    A(f"""
    s_lshl_b32 s48, s38, 2
    s_lshl_b32 s49, s36, 1
    s_add_u32 s48, s48, s49
    s_mul_i32 s48, s48, {144*1024}
    s_lshl_b32 s49, s39, 3
    s_lshl_b32 s53, s37, 1
    s_add_u32 s49, s49, s53
    s_add_u32 s49, s49, 32
    s_lshl_b32 s49, s49, 10
    s_add_u32 s48, s48, s49
    v_mov_b32 v12, {f2u(c0)}
    v_mov_b32 v14, {f2u(c1)}
    v_mov_b32 v10, 1.0
    """)
    T = AF
    for mt in range(2):
        G_, U = acc(0, mt), acc(1, mt)
        for i0 in range(0, 16, 8):
            R = range(0, 8, 2)
            for i in R: A(f"v_pk_mul_f32 {v(T+i,2)}, {v(G_+i0+i,2)}, {v(G_+i0+i,2)}")
            for i in R: A(f"v_pk_fma_f32 {v(T+i,2)}, {v(T+i,2)}, v[14:15], v[12:13] op_sel_hi:[1,0,0]")
            for i in R: A(f"v_pk_mul_f32 {v(T+i,2)}, {v(T+i,2)}, {v(G_+i0+i,2)}")
            for i in range(8): A(f"v_exp_f32 v{T+i}, v{T+i}")
            for i in R: A(f"v_pk_mul_f32 {v(G_+i0+i,2)}, {v(G_+i0+i,2)}, {v(U+i0+i,2)}")
            for i in R: A(f"v_pk_add_f32 {v(T+i,2)}, {v(T+i,2)}, v[10:11] op_sel_hi:[1,0]")
            for i in range(8): A(f"v_rcp_f32 v{T+i}, v{T+i}")
            A("s_nop 0")
            for i in R: A(f"v_pk_mul_f32 {v(G_+i0+i,2)}, {v(G_+i0+i,2)}, {v(T+i,2)}")
        for i in range(8):
            A(f"v_cvt_pk_bf16_f32 v{U+i}, v{G_+2*i}, v{G_+2*i+1}")
    A(f"s_setprio {lowprio}")
    for mt in range(2):
        U = acc(1, mt)
        A(f"s_add_u32 s49, s48, {mt*144*1024}")
        A(f"buffer_store_dwordx4 {v(U,4)}, v6, s[28:31], s49 offen sc1")
        A(f"buffer_store_dwordx4 {v(U+4,4)}, v6, s[28:31], s49 offen offset:1024 sc1")
    A(f"""s_lshl_b32 s49, s38, 7
    s_lshl_b32 s53, s39, 3
    s_add_u32 s49, s49, s53
    s_add_u32 s49, s49, {FLG_H}""")
    signal(A, name, "s49")
    A.stamp(3)
    A(f"s_branch {name}_down2")
    A.label(f"{name}_down")
    A(f"""s_and_b32 s49, s2, 7
    s_lshl_b32 s49, s49, 10
    s_add_u32 s49, s49, {FLG_KVR}""")
    poll_kv(A, name, "s49")
    A("s_sleep 64")
    A(f"v_lshlrev_b32 v{TB_}, 7, v1")
    A(f"""
    s_sub_u32 s53, s2, 224
    s_lshr_b32 s53, s53, 3
    s_lshl_b32 s53, s53, 3
    s_add_u32 s53, s53, s3                 ; 0..31
    s_mul_i32 s54, s53, {56*1024}
    s_lshl_b32 s55, s53, 14
    """)
    for j in range(7):
        A(f"s_add_u32 s48, s54, {j*8192}")
        A(f"buffer_load_dword v{TD}, v{TB_}, s[64:67], s48 offen")
        A("s_waitcnt vmcnt(2)")
    for j in range(2):
        A(f"s_add_u32 s48, s55, {j*8192}")
        A(f"buffer_load_dword v{TD}, v{TB_}, s[32:35], s48 offen")
    A.label(f"{name}_down2")
    V.reset()
    A(f"""
    s_mov_b32 s37, s61
    s_mov_b32 s36, s60
    """)
    srd(A, 16, 56, 57, 2048 * 1024)
    srd(A, 20, 10, 11, 2048 * 1024)
    A(f"""
    v_lshrrev_b32 v9, 3, v1
    v_bfe_u32 v10, v1, 2, 1
    v_bfe_u32 v11, v1, 4, 1
    v_xor_b32 v10, v10, v11
    v_lshlrev_b32 v9, 10, v9
    v_lshl_add_u32 v9, v10, 6, v9
    v_and_b32 v10, 3, v1
    v_lshl_add_u32 v9, v10, 4, v9
    s_lshl_b32 s40, s36, 7
    v_add_u32 v9, s40, v9
    s_mul_i32 s41, s3, {224*1024}
    s_mul_i32 s42, s3, {14*1024}
    s_add_u32 s42, s42, {32*1024}
    s_lshl_b32 s43, s37, 1
    s_mul_i32 s43, s43, {144*1024}
    s_add_u32 s42, s42, s43
    s_mul_i32 s44, s3, {4*2048}
    v_bfe_u32 v10, v1, 2, 2
    v_lshl_add_u32 v11, v3, 2, v10
    v_lshlrev_b32 v11, 7, v11
    v_bfe_u32 v12, v1, 4, 1
    v_lshl_add_u32 v11, v12, 5, v11
    v_and_b32 v12, 3, v1
    v_lshl_add_u32 v11, v12, 3, v11
    v_add_u32 v11, s44, v11
    v_lshrrev_b32 v10, 1, v10
    v_lshl_add_u32 v12, v10, 6, v11
    v_xor_b32 v10, 1, v10
    v_lshl_add_u32 v13, v10, 6, v11
    """)
    WR = 4
    def issueW(k, srdW, tag):
        slot = k % WR
        return [([f"s_add_u32 m0, s44, {slot*2048 + j*1024}", f"s_add_u32 s46, s41, {j*8192}"], f"buffer_load_dwordx4 v9, s[{srdW}:{srdW+3}], s46 offen lds", tag, ["s_add_u32 s41, s41, 16384"] if j == 1 else []) for j in range(2)]
    def issueB(k, tag):
        slot = k % DR
        return [([f"s_add_u32 s46, s42, {mt*144*1024}", "s_nop 0"], f"buffer_load_dwordx4 {v(DBF+8*slot+4*mt,4)}, v6, s[28:31], s46 offen", tag, ["s_add_u32 s42, s42, 1024"] if mt == 1 else []) for mt in range(2)]
    def wreads(k):
        slot = k % WR; ab = AF + 8*(k % 2); L = []
        for nt in range(2):
            fr = ab + 4*nt; off = slot*2048
            L.append(f"ds_read_b64_tr_b16 {v(fr,2)}, v{12+nt} offset:{off}")
            L.append(f"ds_read_b64_tr_b16 {v(fr+2,2)}, v{12+nt} offset:{off+1024}")
        return L
    def dmf(k, first):
        ab = AF + 8*(k % 2); L = []
        for nt in range(2):
            for mt in range(2):
                D = ACC + 16*(nt*2+mt)
                L.append(f"v_mfma_f32_32x32x16_bf16 {v(D,16)}, {v(ab+4*nt,4)}, {v(DBF+8*(k % DR)+4*mt,4)}, {'0' if first else v(D,16)}")
        return L
    NH = 14
    for k in range(3):
        for g in issueW(k, 64, ("W", k)): emit4(g)
    A(f"""
    s_lshr_b32 s47, s3, 1
    s_and_b32 s48, s47, 1
    s_lshr_b32 s47, s47, 1
    s_and_b32 s50, s3, 1
    s_lshl_b32 s49, s37, 6
    s_lshl_b32 s53, s48, 5
    s_add_u32 s49, s49, s53
    s_lshl_b32 s49, s49, 10
    s_lshl_b32 s53, s36, 7
    s_add_u32 s49, s49, s53
    s_lshl_b32 s53, s47, 6
    s_add_u32 s49, s49, s53
    s_lshl_b32 s53, s50, 5
    s_add_u32 s49, s49, s53
    v_lshlrev_b32 v14, 10, v2
    v_add_u32 v14, s49, v14
    v_lshl_add_u32 v15, v3, 3, v14
    """)
    for j in range(2):
        V.op(f"buffer_load_dwordx2 {v(XR_+2*j,2)}, v15, s[16:19], 0 offen offset:{16*j}", "x")
    A(f"""s_lshr_b32 s49, s37, 1
    s_lshl_b32 s49, s49, 7
    s_add_u32 s49, s49, {FLG_H}""")
    poll(A, name, "s49", 14, need_epoch=True)
    A.stamp(4)
    for k in range(2):
        for g in issueB(k, ("B", k)): emit4(g)
    V.wait([("W", 0)])
    for x in wreads(0): A(x)
    for k in range(NH):
        items = [("B", k)] + ([("W", k+1)] if k + 1 < NH else [])
        V.wait(items, " lgkmcnt(0)")
        Rn = wreads(k+1) if k + 1 < NH else []
        Gi = (issueB(k+2, ("B", k+2)) if k + 2 < NH else []) + (issueW(k+3, 64, ("W", k+3)) if k + 3 < NH else [])
        M = dmf(k, k == 0)
        for i in range(4):
            A(M[i])
            if i < len(Rn): A(Rn[i])
            if i < len(Gi): emit4(Gi[i])
    A.stamp(5)
    A.nop(16)
    A("s_waitcnt lgkmcnt(0)")
    A("s_barrier")
    l1 = A.newlabel(name + "_r1"); l2 = A.newlabel(name + "_r2")
    A(f"""
    s_and_b32 s50, s3, 3
    s_lshl_b32 s50, s50, 14
    v_add_u32 v7, s50, v6
    s_cmp_lt_u32 s3, 4
    s_cbranch_scc1 {l1}
    """)
    for t in range(4):
        for qd in range(4):
            A(f"ds_write_b128 v7, {v(ACC+16*t+4*qd,4)} offset:{t*4096+qd*1024}")
    A.label(l1)
    A(f"""s_waitcnt lgkmcnt(0)
    s_barrier
    s_cmp_ge_u32 s3, 4
    s_cbranch_scc1 {l2}
    """)
    for half in range(2):
        for t in range(2):
            for qd in range(4):
                A(f"ds_read_b128 {v(80+16*t+4*qd,4)}, v7 offset:{(2*half+t)*4096+qd*1024}")
        A("s_waitcnt lgkmcnt(0)")
        for i in range(0, 32, 2):
            A(f"v_pk_add_f32 {v(ACC+32*half+i,2)}, {v(ACC+32*half+i,2)}, {v(80+i,2)}")
    for t in range(4):
        for qd in range(4):
            A(f"ds_write_b128 v7, {v(ACC+16*t+4*qd,4)} offset:{t*4096+qd*1024}")
    A.label(l2)
    A(f"""s_waitcnt lgkmcnt(0)
    s_barrier
    s_lshr_b32 s50, s3, 1
    s_lshl_b32 s50, s50, 12
    s_and_b32 s53, s3, 1
    s_lshl_b32 s53, s53, 11
    s_add_u32 s50, s50, s53
    v_add_u32 v7, s50, v6
    """)
    for ww in range(4):
        for qd in range(2):
            A(f"ds_read_b128 {v(ACC+8*ww+4*qd,4)}, v7 offset:{ww*16384+qd*1024}")
    for j in range(2):
        A(f"v_lshlrev_b32 v{80+4*j}, 16, v{XR_+2*j}")
        A(f"v_and_b32 v{81+4*j}, 0xffff0000, v{XR_+2*j}")
        A(f"v_lshlrev_b32 v{82+4*j}, 16, v{XR_+1+2*j}")
        A(f"v_and_b32 v{83+4*j}, 0xffff0000, v{XR_+1+2*j}")
    A("s_waitcnt lgkmcnt(0)")
    A("s_barrier")
    A(f"""
    s_lshl_b32 s41, s3, 16
    s_lshl_b32 s44, s3, 13
    """)
    for j in range(8):
        A(f"""s_add_u32 m0, s44, {j*1024}
        s_add_u32 s46, s41, {j*8192}
        buffer_load_dwordx4 v9, s[32:35], s46 offen lds""")
    for i in range(0, 8, 2):
        A(f"v_pk_add_f32 {v(ACC+i,2)}, {v(ACC+i,2)}, {v(ACC+8+i,2)}")
        A(f"v_pk_add_f32 {v(ACC+16+i,2)}, {v(ACC+16+i,2)}, {v(ACC+24+i,2)}")
    for i in range(0, 8, 2):
        A(f"v_pk_add_f32 {v(ACC+i,2)}, {v(ACC+i,2)}, {v(80+i,2)}")
    for i in range(0, 8, 2):
        A(f"v_pk_add_f32 {v(ACC+i,2)}, {v(ACC+i,2)}, {v(ACC+16+i,2)}")
    A(f"""
    s_lshr_b32 s47, s3, 2                  ; nt
    s_bfe_u32 s48, s3, 0x10001             ; mt
    s_and_b32 s50, s3, 1                   ; kh
    v_bfe_u32 v10, v1, 2, 2                ; r
    v_lshl_add_u32 v11, v3, 2, v10         ; 4h + r
    v_lshlrev_b32 v11, 7, v11
    v_bfe_u32 v12, v1, 4, 1
    v_lshl_add_u32 v11, v12, 5, v11
    v_and_b32 v12, 3, v1
    v_lshl_add_u32 v11, v12, 3, v11
    v_lshrrev_b32 v10, 1, v10
    v_xor_b32 v10, s47, v10
    v_lshl_add_u32 v11, v10, 6, v11
    s_lshl_b32 s53, s50, 15
    v_add_u32 v11, s53, v11
    s_mul_i32 s42, s48, {144*1024}
    s_add_u32 s42, s42, s43
    s_lshl_b32 s53, s50, 14
    s_add_u32 s42, s42, s53
    s_waitcnt vmcnt(0)
    s_barrier
    """)
    WA, OB, OD = 40, 104, 24
    for st in range(16):
        A(f"ds_read_b64_tr_b16 {v(WA+4*st,2)}, v11 offset:{st*2048}")
        A(f"ds_read_b64_tr_b16 {v(WA+4*st+2,2)}, v11 offset:{st*2048+1024}")
    A(f"""s_lshl_b32 s49, s37, 7
    s_add_u32 s49, s49, {FLG_O}""")
    A("s_waitcnt lgkmcnt(0)")
    poll(A, name, "s49", 8)
    A.stamp(6)
    V.reset()
    NB = 6
    def ob(st):
        A(f"s_add_u32 s46, s42, {(st//4)*4096}")
        V.op(f"buffer_load_dwordx4 {v(OB+4*(st%NB),4)}, v6, s[28:31], s46 offen offset:{(st%4)*1024}", ("O", st))
    for st in range(NB): ob(st)
    for st in range(16):
        V.wait([("O", st)])
        A(f"v_mfma_f32_32x32x16_bf16 {v(OD,16)}, {v(WA+4*st,4)}, {v(OB+4*(st%NB),4)}, {'0' if st == 0 else v(OD,16)}")
        if st + NB < 16: ob(st + NB)
    A(f"""
    s_lshl_b32 s41, s3, 11
    v_add_u32 v7, s41, v6
    s_xor_b32 s41, s41, 2048
    v_add_u32 v4, s41, v6
    s_nop 7
    s_nop 3
    s_cmp_eq_u32 s50, 0
    s_cbranch_scc1 {name}_nosw2
    """)
    for i in range(8): A(f"v_swap_b32 v{OD+i}, v{OD+8+i}")
    A.label(f"{name}_nosw2")
    A(f"""
    ds_write_b128 v7, {v(OD+8,4)}
    ds_write_b128 v7, {v(OD+12,4)} offset:1024
    """)
    for i in range(0, 8, 2): A(f"v_pk_add_f32 {v(ACC+i,2)}, {v(ACC+i,2)}, {v(OD+i,2)}")
    A(f"""
    s_waitcnt lgkmcnt(0)
    s_barrier
    ds_read_b128 {v(40,4)}, v4
    ds_read_b128 {v(44,4)}, v4 offset:1024
    s_waitcnt lgkmcnt(0)
    """)
    for i in range(0, 8, 2): A(f"v_pk_add_f32 {v(ACC+i,2)}, {v(ACC+i,2)}, {v(40+i,2)}")
    for i in range(4):
        A(f"v_cvt_pk_bf16_f32 v{96+i}, v{ACC+2*i}, v{ACC+2*i+1}")
    A(f"""s_nop 1
    v_permlane32_swap_b32 v96, v98
    v_permlane32_swap_b32 v97, v99
    v_lshl_add_u32 v15, v3, 4, v14
    buffer_store_dwordx4 v[96:99], v15, s[20:23], 0 offen
    """)
    A.stamp_flush(2, 12, 13, 3, 1, 8, t0=20)

def build(path, stamps=False, **kw):
    HEADER = open("parallel_sum__grouped_kv_mqa__glu_gated_geglu__prompt.s.ref").read().split("; Override launch")[0]
    t, d = gen_mega(stamps=stamps, **kw)
    out = HEADER + "; @launch grid=(512,1,1) block=(512,1,1) lds=81920\n" + '.amdgcn_target "amdgcn-amd-amdhsa--gfx950"\n.text\n' + t + '.section .rodata,"a"\n.p2align 6\n' + d
    open(path, "w").write(out)
if __name__ == "__main__":
    build("m9.s"); build("m9s.s", stamps=True)
```

```python
from asmlib import *
import math, struct
from kgemm import VM
def f2u(x): return struct.unpack("<I", struct.pack("<f", x))[0]
WS_XN   = 0
WS_KV   = 2 << 20
WS_KMAX = WS_KV + (128 << 10)
WS_FLG  = 3 << 20
FLG_KVR = WS_FLG + 16384
FLG_KV, FLG_XN, FLG_H, FLG_O = WS_FLG, WS_FLG + 1024, WS_FLG + 4096, WS_FLG + 8192
WS_AT   = 6 << 20
AT_BYTES = 64 * 144 * 1024
SLOT = 16384
STG = 24576
EP = 68

def get_epoch(A, name):
    lab = A.newlabel(name + "_ep")
    A("v_mov_b32 v126, 0")
    A.label(lab)
    A(f"""
    global_load_dwordx2 v[124:125], v126, s[14:15] sc1
    s_waitcnt vmcnt(0)
    v_readfirstlane_b32 s{EP}, v124
    v_readfirstlane_b32 s{EP+1}, v125
    s_or_b32 s46, s{EP}, s{EP+1}
    s_cmp_eq_u32 s46, 0
    s_cbranch_scc1 {lab}
    """)

def epoch_async(A, name):
    done = A.newlabel(name + "_eed")
    A(f"""
    s_cmp_lg_u32 s3, 0
    s_cbranch_scc1 {done}
    v_mov_b32 v126, 0
    global_load_dwordx2 v[124:125], v126, s[14:15] sc1
    """)
    A.label(done)

def epoch_use(A, name):
    ok = A.newlabel(name + "_eok")
    A(f"""
    v_readfirstlane_b32 s{EP}, v124
    v_readfirstlane_b32 s{EP+1}, v125
    s_or_b32 s46, s{EP}, s{EP+1}
    s_cmp_lg_u32 s46, 0
    s_cbranch_scc1 {ok}
    """)
    get_epoch(A, name)
    A.label(ok)

def poll(A, name, off_s, n, need_epoch=False):
    lab = A.newlabel(name + "_poll"); done = A.newlabel(name + "_polled")
    A(f"""
    s_cmp_lg_u32 s3, 0
    s_cbranch_scc1 {done}
    """)
    if need_epoch: get_epoch(A, name)
    A(f"""
    v_lshlrev_b32 v4, 3, v1
    v_add_u32 v4, {off_s}, v4
    s_mov_b64 s[46:47], exec
    s_mov_b32 exec_lo, {hex(((1 << n) - 1) & 0xffffffff)}
    s_mov_b32 exec_hi, {hex(((1 << n) - 1) >> 32)}
    """)
    A.label(lab)
    A(f"""
    global_load_dwordx2 v[124:125], v4, s[12:13] sc1
    s_waitcnt vmcnt(0)
    v_cmp_ne_u64 vcc, s[{EP}:{EP+1}], v[124:125]
    s_cmp_eq_u64 vcc, 0
    s_cbranch_scc1 {lab}_ok
    s_sleep 2
    s_branch {lab}
    """)
    A.label(lab + "_ok")
    A("s_mov_b64 exec, s[46:47]")
    A.label(done)
    A("s_barrier")

def poll_kv(A, name, off_s, have_async=False):
    lab = A.newlabel(name + "_pollkv"); done = A.newlabel(name + "_polledkv")
    A(f"""
    s_cmp_lg_u32 s3, 0
    s_cbranch_scc1 {done}
    """)
    if have_async: epoch_use(A, name)
    else: get_epoch(A, name)
    A(f"""
    v_add_u32 v4, {off_s}, v6
    """)
    A.label(lab)
    A(f"""
    global_load_dwordx4 v[124:127], v4, s[12:13] sc1
    s_waitcnt vmcnt(0)
    v_cmp_ne_u64 vcc, s[{EP}:{EP+1}], v[124:125]
    v_cmp_ne_u64 s[46:47], s[{EP}:{EP+1}], v[126:127]
    s_or_b64 vcc, vcc, s[46:47]
    s_cmp_eq_u64 vcc, 0
    s_cbranch_scc1 {done}
    s_sleep 3
    s_branch {lab}
    """)
    A.label(done)
    A("s_barrier")

def signal(A, name, off_s, need_epoch=False):
    done = A.newlabel(name + "_sig")
    A(f"""
    s_waitcnt vmcnt(0)
    s_barrier
    s_cmp_lg_u32 s3, 0
    s_cbranch_scc1 {done}
    """)
    if need_epoch: get_epoch(A, name)
    A(f"""
    v_mov_b32 v4, {off_s}
    v_mov_b32 v124, s{EP}
    v_mov_b32 v125, s{EP+1}
    s_mov_b64 s[46:47], exec
    s_mov_b64 exec, 1
    global_store_dwordx2 v4, v[124:125], s[12:13] sc1
    s_mov_b64 exec, s[46:47]
    """)
    A.label(done)

def dpp_sum8(A, r):
    for ctrl in ("quad_perm:[1,0,3,2]", "quad_perm:[2,3,0,1]", "row_half_mirror"):
        A("s_nop 1")
        A(f"v_add_f32_dpp v{r}, v{r}, v{r} {ctrl} row_mask:0xf bank_mask:0xf")

def lane_reduce_max(A, vr, tmp_s0, out_s):
    for sh in (1,2,4,8):
        A("s_nop 1")
        A(f"v_max_f32_dpp v{vr}, v{vr}, v{vr} row_shr:{sh} row_mask:0xf bank_mask:0xf")
    A("s_nop 1")
    A(f"""v_readlane_b32 s{tmp_s0}, v{vr}, 15
    v_readlane_b32 s{tmp_s0+1}, v{vr}, 31
    v_readlane_b32 s{tmp_s0+2}, v{vr}, 47
    v_readlane_b32 s{tmp_s0+3}, v{vr}, 63
    s_nop 1
    v_mov_b32 v{vr}, s{tmp_s0}
    v_max_f32 v{vr}, s{tmp_s0+1}, v{vr}
    v_max_f32 v{vr}, s{tmp_s0+2}, v{vr}
    v_max_f32 v{vr}, s{tmp_s0+3}, v{vr}
    s_nop 0
    v_readfirstlane_b32 s{out_s}, v{vr}""")

S0, S1, O, C, P, Q, Kf, Vf = 16, 32, 48, 64, 80, 88, 92, 100
vKc, vKn, vVc, vVn, vKl, vVl = 116, 117, 118, 119, 120, 121

def att_stage(A, i):
    par = i % 2
    Sc, Sn = (S0, S1) if par == 0 else (S1, S0)
    kold, knxt = Kf + 4*par, Kf + 4*(1-par)
    vcur, vprev = Vf + 8*par, Vf + 8*(1-par)
    E = lambda k: A(f"v_exp_f32 v{Sc+k}, v{Sc+k}")
    Cv = lambda k: A(f"v_cvt_pk_bf16_f32 v{P+k}, v{Sc+2*k}, v{Sc+2*k+1}")
    M = lambda D, a_, b_, c_: A(f"v_mfma_f32_32x32x16_bf16 {v(D,16)}, {v(a_,4)}, {v(b_,4)}, {v(c_,16)}")
    E(0); E(1)
    M(O, vprev+4, P+4, O)
    for k in range(2,6): E(k)
    if i == 6:
        A("s_waitcnt vmcnt(0)")
        A("s_barrier")
        A.chunk_issue()
    A("s_waitcnt lgkmcnt(0)")
    M(Sn, knxt, Q, C)
    kt = i + 2
    A(f"ds_read_b128 {v(kold,4)}, v{vKc if kt < 8 else vKn} offset:{(kt % 8)*2048}")
    vt = i + 1
    va = vVc if vt < 8 else vVn
    A("s_mov_b64 exec, s[60:61]")
    A(f"ds_read_b128 {v(vprev,4)}, v{va} offset:{(vt % 8)*2048 + 1024}")
    A(f"ds_read_b128 {v(vprev+4,4)}, v{va} offset:{(vt % 8)*2048 + 1536}")
    A("s_mov_b64 exec, -1")
    E(6); E(7)
    for k in range(4): Cv(k)
    E(8); E(9)
    M(O, vcur, P, O)
    for k in range(10,16): E(k)
    for k in range(4,8): Cv(k)

def gen_mega(name="parallel_sum__grouped_kv_mqa__glu_gated_geglu__prompt_kernel", stamps=False, prio=2, lowprio=0):
    A = Asm(); A.stamps = stamps
    N = "m"
    A.raw(kernel_header(name).rstrip("\n"))
    A(f"""
    s_cmp_ge_u32 s2, 512
    s_cbranch_scc1 {N}_end
    s_xor_b32 s2, s2, 256
    """)
    A.stamp(0)
    A(f"""
    s_load_dwordx2 s[4:5], s[0:1], 0       ; x
    s_load_dwordx2 s[6:7], s[0:1], 8       ; wq
    s_load_dwordx4 s[8:11], s[0:1], 16
    s_load_dwordx4 s[12:15], s[0:1], 80
    v_and_b32 v1, 63, v0                   ; lane
    v_lshrrev_b32 v5, 6, v0                ; wave
    s_cmp_lt_u32 s2, 256
    v_readfirstlane_b32 s3, v5
    s_cselect_b32 s41, 3, 4
    s_cselect_b32 s42, 7, 15
    s_cselect_b32 s43, 7, 8
    s_cselect_b32 s44, 31, 63
    s_cselect_b32 s45, 16, 15
    s_cselect_b32 s46, 13, 12
    s_lshl_b32 s43, 1, s43
    s_and_b32 s37, s2, s44
    s_lshl_b32 s38, s37, s45
    s_lshl_b32 s39, s3, s46
    s_add_u32 s38, s38, s39
    v_lshrrev_b32 v4, s41, v1
    v_and_b32 v5, s42, v1                  ; c
    v_lshlrev_b32 v7, 10, v4
    v_lshl_add_u32 v7, v5, 4, v7
    s_mov_b32 s18, {2048*1024}
    s_mov_b32 s19, 0x00020000
    s_waitcnt lgkmcnt(0)
    s_mov_b32 s16, s4
    s_and_b32 s17, s5, 0xffff
    s_cmp_gt_u32 s2, 447
    s_cbranch_scc1 {N}_nox
    buffer_load_dwordx4 v[8:11], v7, s[16:19], s38 offen
    s_add_u32 s38, s38, s43
    buffer_load_dwordx4 v[12:15], v7, s[16:19], s38 offen
    s_add_u32 s38, s38, s43
    buffer_load_dwordx4 v[16:19], v7, s[16:19], s38 offen
    s_add_u32 s38, s38, s43
    buffer_load_dwordx4 v[20:23], v7, s[16:19], s38 offen
    s_add_u32 s38, s38, s43
    {N}_nox:
    v_and_b32 v2, 31, v0                   ; m
    v_bfe_u32 v3, v0, 5, 1                 ; h
    v_lshlrev_b32 v6, 4, v1                ; lane*16
    s_mov_b32 s46, s12
    s_mov_b32 s47, s13
    s_mov_b32 s12, s14
    s_mov_b32 s13, s15                     ; s[12:13] = ws
    s_mov_b32 s14, s46
    s_mov_b32 s15, s47                     ; s[14:15] = dbg
    s_cmp_lt_u32 s2, 256
    s_cbranch_scc1 {N}_att
    s_cmp_gt_u32 s2, 447
    s_cbranch_scc1 {N}_gsleep
    """)
    gen_kvx(A, N)
    A(f"s_branch {N}_gmain2")
    A.label(f"{N}_gsleep")
    A("s_sleep 64")
    A.label(f"{N}_gmain2")
    gen_g(A, N, prio, lowprio)
    A("s_endpgm")
    A.label(f"{N}_att")
    A("s_setprio 1")
    A("s_lshr_b32 s36, s2, 5                  ; hg")
    for j in range(4, 8):
        A(f"buffer_load_dwordx4 {v(8+4*j,4)}, v7, s[16:19], s38 offen offset:{(j-4)*128}")
    A(f"""
    s_and_b32 s38, s3, 1                   ; rh
    s_bfe_u32 s39, s3, 0x10001             ; hp
    s_lshr_b32 s40, s3, 2                  ; kh
    """)
    srd(A, 20, 6, 7, 512 * 1024)
    A(f"""
    v_bfe_u32 v40, v1, 2, 1                ; pos
    v_bfe_u32 v41, v1, 4, 1                ; (r8>>1)&1
    v_xor_b32 v40, v40, v41                ; q
    v_lshlrev_b32 v127, 6, v40
    v_and_b32 v40, 3, v1
    v_lshl_add_u32 v127, v40, 4, v127
    v_lshl_add_u32 v127, v4, 10, v127      ; + r8*1024   (v4 = l/8)
    s_lshl_b32 s41, s36, 7
    v_add_u32 v127, s41, v127
    s_lshl_b32 s42, s3, 16                 ; w*8*8*1024 global
    s_lshl_b32 s43, s3, 13                 ; w*8*1024 lds
    v_bfe_u32 v40, v1, 2, 2                ; r
    v_lshl_add_u32 v122, v3, 3, v40
    v_lshlrev_b32 v122, 7, v122
    v_lshrrev_b32 v40, 1, v40
    v_xor_b32 v40, s39, v40
    v_lshl_add_u32 v122, v40, 6, v122
    v_bfe_u32 v40, v1, 4, 1
    v_lshl_add_u32 v122, v40, 5, v122
    v_and_b32 v40, 3, v1
    v_lshl_add_u32 v122, v40, 3, v122
    s_lshl_b32 s41, s40, 15
    v_add_u32 v122, s41, v122
    v_mov_b32 v104, 0x3f803f80
    v_mov_b32 v105, 0
    v_mov_b32 v106, 0
    """)
    for j in range(8):
        A(f"""s_add_u32 m0, s43, {j*1024}
        s_add_u32 s41, s42, {j*8192}
        buffer_load_dwordx4 v127, s[20:23], s41 offen lds""")
    A("s_waitcnt vmcnt(8)")
    epoch_async(A, N)
    A.stamp(1)
    def wdma(j): return [f"s_add_u32 m0, s43, {j*1024}", f"s_add_u32 s41, s42, {j*8192}", "buffer_load_dwordx4 v127, s[20:23], s41 offen lds"]
    Amain = A
    A = Asm()
    for i in range(32):
        A(f"v_dot2c_f32_bf16 v{105 + (i%2)}, v{8+i}, v104")
    for i in range(32):
        A(f"v_lshlrev_b32 v{40+2*i}, 16, v{8+i}")
        A(f"v_and_b32 v{41+2*i}, 0xffff0000, v{8+i}")
    A("v_add_f32 v105, v105, v106")
    dpp_sum8(A, 105)
    A(f"""
    v_mul_f32 v107, 0x3b000000, v105       ; mean
    v_cvt_pk_bf16_f32 v108, v107, v107
    v_lshlrev_b32 v108, 16, v108           ; m_b
    v_sub_f32 v110, 0, v108
    v_sub_f32 v107, v107, v108             ; delta
    v_mov_b32 v112, 0
    v_mov_b32 v113, 0
    """)
    for i in range(32):
        A(f"v_pk_add_f32 {v(40+2*i,2)}, {v(40+2*i,2)}, v[110:111] op_sel_hi:[1,0]")
    for i in range(32):
        A(f"v_pk_fma_f32 v[112:113], {v(40+2*i,2)}, {v(40+2*i,2)}, v[112:113]")
    A("v_add_f32 v112, v112, v113")
    dpp_sum8(A, 112)
    A(f"""
    v_mul_f32 v112, 0x3b000000, v112
    v_fma_f32 v112, -v107, v107, v112
    v_max_f32 v112, 0, v112
    v_cvt_pk_bf16_f32 v112, v112, v112
    v_lshlrev_b32 v112, 16, v112
    v_add_f32 v112, 0x3727c5ac, v112
    v_cvt_pk_bf16_f32 v112, v112, v112
    v_lshlrev_b32 v112, 16, v112
    v_sqrt_f32 v112, v112
    s_nop 0
    v_cvt_pk_bf16_f32 v112, v112, v112
    v_lshlrev_b32 v112, 16, v112
    v_rcp_f32 v110, v112
    """)
    for i in range(32):
        A(f"v_cvt_pk_bf16_f32 v{8+i}, v{40+2*i}, v{41+2*i}")
    for i in range(32):
        A(f"v_lshlrev_b32 v{40+2*i}, 16, v{8+i}")
        A(f"v_and_b32 v{41+2*i}, 0xffff0000, v{8+i}")
    for i in range(32):
        A(f"v_pk_mul_f32 {v(40+2*i,2)}, {v(40+2*i,2)}, v[110:111] op_sel_hi:[1,0]")
    for i in range(32):
        A(f"v_cvt_pk_bf16_f32 v{8+i}, v{40+2*i}, v{41+2*i}")
    ln = A.lines
    A = Amain
    interleave(A, ln, [], start=0, every=12)
    A.stamp(2)
    A(f"""
    s_waitcnt vmcnt(0)
    s_barrier
    """)
    for st in range(16):
        A(f"ds_read_b64_tr_b16 {v(40+4*st,2)}, v122 offset:{st*2048}")
        A(f"ds_read_b64_tr_b16 {v(42+4*st,2)}, v122 offset:{st*2048+512}")
    A(f"""
    s_and_b32 s41, s3, 3
    s_lshl_b32 s41, s41, 3
    v_add_u32 v4, s41, v4                  ; m
    v_xor_b32 v4, v4, v5
    v_lshlrev_b32 v4, 4, v4
    v_lshrrev_b32 v7, 1, v5
    v_lshl_add_u32 v4, v7, 10, v4
    v_and_b32 v7, 1, v5
    v_lshl_add_u32 v4, v7, 9, v4
    s_lshl_b32 s41, s40, 15                ; (w/4)*32768
    v_add_u32 v4, s41, v4
    v_xor_b32 v7, v2, v3
    v_lshlrev_b32 v7, 4, v7
    v_lshl_add_u32 v7, v3, 9, v7
    s_lshl_b32 s41, s38, 15
    s_lshl_b32 s42, s40, 14
    s_add_u32 s41, s41, s42
    v_add_u32 v120, s41, v7
    v_xor_b32 v121, 32, v120
    v_xor_b32 v122, 64, v120
    v_xor_b32 v123, 96, v120
    s_waitcnt lgkmcnt(0)
    s_barrier
    """)
    for j in range(8):
        A(f"ds_write_b128 v4, {v(8+4*j,4)} offset:{j*4096}")
    A("s_waitcnt lgkmcnt(0)")
    A("s_barrier")
    A.stamp(3)
    QD = 104
    A.label(f"{N}_qproj")
    def brd(st): A(f"ds_read_b128 {v(8+4*(st%4),4)}, v{120 + st%4} offset:{st*1024}")
    brd(0); brd(1); brd(2)
    for st in range(16):
        if st + 3 < 16:
            brd(st+3); A("s_waitcnt lgkmcnt(3)")
        else:
            A(f"s_waitcnt lgkmcnt({15-st})")
        c_ = "0" if st == 0 else v(QD,16)
        A(f"v_mfma_f32_32x32x16_bf16 {v(QD,16)}, {v(40+4*st,4)}, {v(8+4*(st%4),4)}, {c_}")
    A(f"""
    s_barrier
    s_nop 7
    """)
    A(f"""
    s_lshl_b32 s41, s3, 11
    s_add_u32 s41, s41, 65536
    v_add_u32 v7, s41, v6
    s_xor_b32 s41, s41, 8192
    v_add_u32 v4, s41, v6
    s_cmp_eq_u32 s40, 0
    s_cbranch_scc1 {N}_nosw
    """)
    for i in range(8): A(f"v_swap_b32 v{QD+i}, v{QD+8+i}")
    A.label(f"{N}_nosw")
    A(f"""
    ds_write_b128 v7, {v(QD+8,4)}
    ds_write_b128 v7, {v(QD+12,4)} offset:1024
    v_mov_b32 v5, v4
    s_and_b32 s49, s2, 7
    s_lshl_b32 s49, s49, 10
    s_add_u32 s49, s49, {FLG_KVR}
    s_waitcnt lgkmcnt(0)
    """)
    A.stamp(4)
    srd_off(A, 24, 12, 13, WS_KV, (128 << 10) + 256)
    poll_kv(A, N, "s49", have_async=True)
    A.stamp(5)
    def chunk_load(lds_s, glob_s):
        for j in range(2):
            A(f"""s_add_u32 m0, {lds_s[0]}, {lds_s[1] + j*1024}
            s_add_u32 s41, {glob_s[0]}, {glob_s[1] + j*1024}
            buffer_load_dwordx4 v6, s[24:27], s41 offen lds""")
    A(f"""
    s_lshl_b32 s39, s39, 1
    s_add_u32 s39, s39, s40
    s_lshl_b32 s40, s3, 11
    """)
    chunk_load(("s40", 0), ("s40", 0))
    A(f"""
    v_lshlrev_b32 v7, 2, v1
    s_mov_b32 s41, {128<<10}
    buffer_load_dword v8, v7, s[24:27], s41 offen
    """)
    for cch in range(1, 4): chunk_load(("s40", cch*SLOT), ("s40", cch*SLOT))
    A(f"""
    ds_read_b128 {v(40,4)}, v5
    ds_read_b128 {v(44,4)}, v5 offset:1024
    s_waitcnt lgkmcnt(0)
    """)
    for i in range(8): A(f"v_add_f32 v{QD+i}, v{QD+i}, v{40+i}")
    cq = 0.25 * math.log2(math.e)
    A(f"s_mov_b32 s41, {f2u(cq)}")
    for i in range(8): A(f"v_mul_f32 v{QD+i}, s41, v{QD+i}")
    for i in range(4): A(f"v_cvt_pk_bf16_f32 v{Q+i}, v{QD+2*i}, v{QD+2*i+1}")
    srd_off(A, 28, 12, 13, WS_AT, AT_BYTES)
    A(f"""
    s_mov_b32 s60, 0x0000ffff
    s_mov_b32 s61, 0x0000ffff
    v_mov_b32 v{vKl}, v6
    v_and_b32 v11, 15, v1
    v_lshlrev_b32 v11, 4, v11
    v_lshl_add_u32 v{vVl}, v3, 8, v11
    v_mov_b32 v15, 0x3f803f80
    v_cmp_eq_u32 vcc, 16, v2
    s_mov_b32 s50, 0                       ; cur slot offset (chunk c -> slot c%5)
    s_mov_b32 s51, {SLOT}
    s_mov_b32 s52, 0
    v_mov_b32 v13, 0
    """)
    for i in range(16): A(f"v_cndmask_b32 v{Vf+i}, 0, v15, vcc")
    for i in range(4): A(f"v_dot2c_f32_bf16 v13, v{Q+i}, v{Q+i}")
    for i in range(16): A(f"v_mov_b32 v{O+i}, 0")
    for i in range(8): A(f"v_mov_b32 v{P+i}, 0")
    A(f"""
    v_add_u32 v{vKc}, s50, v{vKl}
    v_add_u32 v{vVc}, s50, v{vVl}
    v_add_u32 v{vKn}, s51, v{vKl}
    v_add_u32 v{vVn}, s51, v{vVl}
    v_mov_b32 v15, v13
    s_nop 1
    v_permlane32_swap_b32 v13, v15
    v_add_f32 v13, v13, v15
    s_waitcnt vmcnt(6)
    s_barrier
    """)
    chunk_load(("s40", 4*SLOT), ("s40", 4*SLOT))
    A(f"""
    ds_read_b128 {v(Kf,4)}, v{vKc} offset:0
    ds_read_b128 {v(Kf+4,4)}, v{vKc} offset:2048
    s_mov_b64 exec, s[60:61]
    ds_read_b128 {v(Vf,4)}, v{vVc} offset:1024
    ds_read_b128 {v(Vf+4,4)}, v{vVc} offset:1536
    s_mov_b64 exec, -1
    """)
    lane_reduce_max(A, 8, 44, 62)
    A(f"""
    s_nop 1
    v_mul_f32 v13, s62, v13
    v_sqrt_f32 v13, v13
    s_nop 0
    v_mul_f32 v13, 0x3f828f5c, v13
    v_cmp_lt_f32 vcc, 0x42200000, v13
    s_cmp_lg_u64 vcc, 0
    s_cbranch_scc0 {N}_fast
    v_mov_b32 v13, 0xff800000
    s_mov_b32 s41, 0
    """)
    A.label(f"{N}_slow")
    A(f"""
    buffer_load_dwordx4 {v(P,4)}, v6, s[24:27], s41 offen
    s_waitcnt vmcnt(0)
    v_mfma_f32_32x32x16_bf16 {v(S0,16)}, {v(P,4)}, {v(Q,4)}, 0
    s_nop 15
    s_nop 7
    """)
    for i in range(8): A(f"v_max3_f32 v13, v{S0+2*i}, v{S0+2*i+1}, v13")
    A(f"""
    s_add_u32 s41, s41, 2048
    s_cmp_lt_u32 s41, {128<<10}
    s_cbranch_scc1 {N}_slow
    v_mov_b32 v15, v13
    s_nop 1
    v_permlane32_swap_b32 v13, v15
    v_max_f32 v13, v13, v15
    """)
    for i in range(4): A(f"v_mov_b32 v{P+i}, 0")
    A.label(f"{N}_fast")
    for i in range(16): A(f"v_sub_f32 v{C+i}, 0, v13")
    A(f"""
    s_waitcnt lgkmcnt(0)
    s_nop 1
    v_mfma_f32_32x32x16_bf16 {v(S0,16)}, {v(Kf,4)}, {v(Q,4)}, {v(C,16)}
    s_nop 15
    """)
    def chunk_issue():
        lab = A.newlabel(f"{N}_noissue")
        A(f"""
        s_add_u32 s53, s52, -1
        s_cmp_gt_u32 s53, 2
        s_cbranch_scc1 {lab}
        s_lshl_b32 s54, s53, 14
        s_add_u32 s54, s54, s40
        s_add_u32 s55, s52, 4
        s_lshl_b32 s55, s55, 14
        s_add_u32 s55, s55, s40
        """)
        chunk_load(("s54", 0), ("s55", 0))
        A.label(lab)
    A.chunk_issue = chunk_issue
    A.stamp(6)
    A.raw(".p2align 6")
    A.label(f"{N}_loop")
    for i in range(8): att_stage(A, i)
    A(f"""
    s_mov_b32 s50, s51
    s_add_u32 s51, s51, {SLOT}
    s_cmp_ge_u32 s51, {5*SLOT}
    s_cselect_b32 s51, 0, s51
    v_mov_b32 v{vKc}, v{vKn}
    v_mov_b32 v{vVc}, v{vVn}
    v_add_u32 v{vKn}, s51, v{vKl}
    v_add_u32 v{vVn}, s51, v{vVl}
    s_add_u32 s52, s52, 1
    s_cmp_lt_u32 s52, 8
    s_cbranch_scc1 {N}_loop
    """)
    A(f"v_mfma_f32_32x32x16_bf16 {v(O,16)}, {v(Vf+8+4,4)}, {v(P+4,4)}, {v(O,16)}")
    A(f"""
    s_lshl_b32 s41, s37, 1
    s_add_u32 s41, s41, s38
    s_mul_i32 s41, s41, {144*1024}
    s_lshl_b32 s42, s36, 12
    s_lshl_b32 s43, s39, 10
    s_add_u32 s41, s41, s42
    s_add_u32 s41, s41, s43
    s_nop 15
    v_mov_b32 v14, v{O+8}
    v_mov_b32 v15, v{O+8}
    s_nop 1
    v_permlane32_swap_b32 v15, v14
    v_rcp_f32 v15, v15
    s_nop 0
    """)
    for i in range(8): A(f"v_mul_f32 v{O+i}, v{O+i}, v15")
    for i in range(4): A(f"v_cvt_pk_bf16_f32 v{P+i}, v{O+2*i}, v{O+2*i+1}")
    A(f"buffer_store_dwordx4 {v(P,4)}, v6, s[28:31], s41 offen sc1")
    A(f"""s_lshl_b32 s49, s37, 7
    s_lshl_b32 s41, s36, 3
    s_add_u32 s49, s49, s41
    s_add_u32 s49, s49, {FLG_O}""")
    signal(A, N, "s49")
    A.stamp_flush(1, 12, 13, 3, 1, 8)
    A("s_endpgm")
    A.label(f"{N}_end")
    A("s_endpgm")
    return A.text(), kernel_desc(name, 128, 100)


def gen_kvx(A, N):
    A("s_setprio 3")
    A(f"""
    s_xor_b32 s46, s2, 256
    s_or_b32 s46, s46, s3
    s_cmp_lg_u32 s46, 0
    s_cbranch_scc1 {N}_noep
    s_memrealtime s[46:47]
    v_mov_b32 v40, 0
    s_waitcnt lgkmcnt(0)
    v_mov_b32 v42, s46
    v_mov_b32 v43, s47
    s_mov_b64 exec, 1
    global_store_dwordx2 v40, v[42:43], s[14:15] sc1
    s_mov_b64 exec, -1
    {N}_noep:
    s_sub_u32 s36, s2, 256
    s_lshr_b32 s36, s36, 6
    """)
    A(f"""
    s_cmp_eq_u32 s36, 1
    s_cselect_b32 s24, s10, s8
    s_cselect_b32 s25, s11, s9
    s_and_b32 s25, s25, 0xffff
    s_mov_b32 s26, {512*32}
    s_mov_b32 s27, 0x00020000
    s_lshl_b32 s43, s3, 11
    s_add_u32 m0, s43, 32768
    s_add_u32 s41, s43, 1024
    buffer_load_dwordx4 v6, s[24:27], s43 offen lds
    s_add_u32 m0, s43, {32768+1024}
    s_nop 0
    buffer_load_dwordx4 v6, s[24:27], s41 offen lds
    ; X write addr: piece j: s = 8j + c16/2, h' = c16%2, m' = (4w + r4) ^ (c16%8)
    s_lshl_b32 s41, s3, 2
    v_add_u32 v40, s41, v4
    v_and_b32 v41, 7, v5
    v_xor_b32 v40, v40, v41
    v_lshlrev_b32 v40, 4, v40
    v_lshrrev_b32 v41, 1, v5
    v_lshl_add_u32 v40, v41, 10, v40
    v_and_b32 v41, 1, v5
    v_lshl_add_u32 v60, v41, 9, v40
    v_xor_b32 v40, v2, v3
    v_lshlrev_b32 v40, 4, v40
    v_lshl_add_u32 v40, v3, 9, v40
    s_lshl_b32 s41, s3, 12
    v_add_u32 v61, s41, v40
    v_xor_b32 v62, 32, v61
    v_xor_b32 v63, 64, v61
    v_xor_b32 v64, 96, v61
    v_bfe_u32 v40, v1, 2, 2
    v_lshl_add_u32 v40, v3, 3, v40
    v_lshlrev_b32 v40, 5, v40
    v_and_b32 v41, 3, v1
    v_lshl_add_u32 v40, v41, 3, v40
    s_lshl_b32 s41, s3, 11
    s_add_u32 s41, s41, 32768
    v_add_u32 v65, s41, v40
    v_mov_b32 v56, 0x3f803f80
    v_mov_b32 v57, 0
    """)
    A("s_waitcnt vmcnt(2)")
    epoch_async(A, N)
    def sum16(r):
        for ctrl in ("quad_perm:[1,0,3,2]", "quad_perm:[2,3,0,1]", "row_half_mirror", "row_mirror"):
            A("s_nop 1")
            A(f"v_add_f32_dpp v{r}, v{r}, v{r} {ctrl} row_mask:0xf bank_mask:0xf")
    for i in range(16): A(f"v_dot2c_f32_bf16 v57, v{8+i}, v56")
    for i in range(16):
        A(f"v_lshlrev_b32 v{24+2*i}, 16, v{8+i}")
        A(f"v_and_b32 v{25+2*i}, 0xffff0000, v{8+i}")
    sum16(57)
    A(f"""
    v_mul_f32 v57, 0x3b000000, v57
    v_cvt_pk_bf16_f32 v58, v57, v57
    v_lshlrev_b32 v58, 16, v58
    v_sub_f32 v66, 0, v58
    v_sub_f32 v57, v57, v58
    v_mov_b32 v68, 0
    v_mov_b32 v69, 0
    """)
    for i in range(16): A(f"v_pk_add_f32 {v(24+2*i,2)}, {v(24+2*i,2)}, v[66:67] op_sel_hi:[1,0]")
    for i in range(16): A(f"v_pk_fma_f32 v[68:69], {v(24+2*i,2)}, {v(24+2*i,2)}, v[68:69]")
    A("v_add_f32 v68, v68, v69")
    sum16(68)
    A(f"""
    v_mul_f32 v68, 0x3b000000, v68
    v_fma_f32 v68, -v57, v57, v68
    v_max_f32 v68, 0, v68
    v_cvt_pk_bf16_f32 v68, v68, v68
    v_lshlrev_b32 v68, 16, v68
    v_add_f32 v68, 0x3727c5ac, v68
    v_cvt_pk_bf16_f32 v68, v68, v68
    v_lshlrev_b32 v68, 16, v68
    v_sqrt_f32 v68, v68
    s_nop 0
    v_cvt_pk_bf16_f32 v68, v68, v68
    v_lshlrev_b32 v68, 16, v68
    v_rcp_f32 v66, v68
    """)
    for i in range(16): A(f"v_cvt_pk_bf16_f32 v{8+i}, v{24+2*i}, v{25+2*i}")
    for i in range(16):
        A(f"v_lshlrev_b32 v{24+2*i}, 16, v{8+i}")
        A(f"v_and_b32 v{25+2*i}, 0xffff0000, v{8+i}")
    for i in range(16): A(f"v_pk_mul_f32 {v(24+2*i,2)}, {v(24+2*i,2)}, v[66:67] op_sel_hi:[1,0]")
    for i in range(16): A(f"v_cvt_pk_bf16_f32 v{8+i}, v{24+2*i}, v{25+2*i}")
    for j in range(4): A(f"ds_write_b128 v60, {v(8+4*j,4)} offset:{j*8192}")
    A("s_waitcnt vmcnt(0) lgkmcnt(0)")
    A("s_barrier")
    for st in range(4):
        A(f"ds_read_b128 {v(8+4*st,4)}, v{61+st} offset:{st*1024}")
    A(f"""
    s_cmp_lg_u32 s36, 2
    s_cbranch_scc1 {N}_kvp
    """)
    srd_off(A, 16, 12, 13, WS_XN, 2048 * 1024)
    A(f"""
    s_lshl_b32 s41, s37, 15
    s_lshl_b32 s42, s3, 12
    s_add_u32 s41, s41, s42
    s_waitcnt lgkmcnt(0)
    """)
    for st in range(4):
        A(f"buffer_store_dwordx4 {v(8+4*st,4)}, v6, s[16:19], s41 offen offset:{st*1024} sc1")
    A(f"s_branch {N}_xsig")
    A.label(f"{N}_kvp")
    for st in range(4):
        A(f"ds_read_b64_tr_b16 {v(24+4*st,2)}, v65 offset:{st*512}")
        A(f"ds_read_b64_tr_b16 {v(26+4*st,2)}, v65 offset:{st*512+128}")
    KD = 40
    srd_off(A, 24, 12, 13, WS_KV, (128 << 10) + 256)
    A(f"""
    s_lshl_b32 s41, s3, 11
    s_add_u32 s41, s41, 49152
    v_add_u32 v4, s41, v6
    v_lshlrev_b32 v5, 4, v2
    v_lshl_add_u32 v5, v3, 8, v5           ; (h*16+m)*16
    v_add_u32 v7, s41, v5
    v_cmp_gt_u32 vcc, 16, v2
    s_mov_b64 s[50:51], vcc
    s_cmp_eq_u32 s36, 1
    s_cbranch_scc1 {N}_xv
    """)
    for st in range(4):
        A(f"s_waitcnt lgkmcnt({2*(3-st)})")
        A(f"v_mfma_f32_32x32x16_bf16 {v(KD,16)}, {v(24+4*st,4)}, {v(8+4*st,4)}, {'0' if st == 0 else v(KD,16)}")
    A(f"""
    s_nop 15
    ds_write_b128 v4, {v(KD,4)}
    ds_write_b128 v4, {v(KD+4,4)} offset:1024
    s_waitcnt lgkmcnt(0)
    s_barrier
    s_cmp_lg_u32 s3, 0
    s_cbranch_scc1 {N}_xsig
    """)
    for ww in range(8):
        A(f"ds_read_b128 {v(8+8*ww,4)}, v4 offset:{ww*2048}")
        A(f"ds_read_b128 {v(12+8*ww,4)}, v4 offset:{ww*2048+1024}")
    A("s_waitcnt lgkmcnt(0)")
    for i in range(0, 8, 2):
        for a_, b_ in ((8, 16), (24, 32), (40, 48), (56, 64)): A(f"v_pk_add_f32 {v(a_+i,2)}, {v(a_+i,2)}, {v(b_+i,2)}")
    for i in range(0, 8, 2):
        A(f"v_pk_add_f32 {v(8+i,2)}, {v(8+i,2)}, {v(24+i,2)}")
        A(f"v_pk_add_f32 {v(40+i,2)}, {v(40+i,2)}, {v(56+i,2)}")
    for i in range(0, 8, 2): A(f"v_pk_add_f32 {v(8+i,2)}, {v(8+i,2)}, {v(40+i,2)}")
    for i in range(4): A(f"v_cvt_pk_bf16_f32 v{16+i}, v{8+2*i}, v{9+2*i}")
    A(f"""
    s_lshl_b32 s42, s37, 11
    buffer_store_dwordx4 v[16:19], v6, s[24:27], s42 offen sc1
    v_mul_f32 v20, v8, v8
    """)
    for i in range(1, 8): A(f"v_fmac_f32 v20, v{8+i}, v{8+i}")
    A(f"""
    v_mov_b32 v21, v20
    s_nop 1
    v_permlane32_swap_b32 v20, v21
    v_add_f32 v20, v20, v21
    """)
    lane_reduce_max(A, 20, 44, 43)
    A(f"""
    s_lshl_b32 s44, s37, 2
    s_add_u32 s44, s44, {128<<10}
    v_mov_b32 v21, s43
    v_mov_b32 v22, 0
    s_mov_b64 exec, 1
    buffer_store_dword v21, v22, s[24:27], s44 offen sc1
    s_mov_b64 exec, -1
    s_branch {N}_xsig
    """)
    A.label(f"{N}_xv")
    for st in range(4):
        A(f"s_waitcnt lgkmcnt({2*(3-st)})")
        A(f"v_mfma_f32_32x32x16_bf16 {v(KD,16)}, {v(8+4*st,4)}, {v(24+4*st,4)}, {'0' if st == 0 else v(KD,16)}")
    A("s_nop 7")
    A("s_nop 7")
    A("s_mov_b64 exec, s[50:51]")
    for qd in range(4): A(f"ds_write_b128 v7, {v(KD+4*qd,4)} offset:{qd*512}")
    A(f"""
    s_mov_b64 exec, -1
    s_waitcnt lgkmcnt(0)
    s_barrier
    s_cmp_gt_u32 s3, 1
    s_cbranch_scc1 {N}_xsig
    s_lshl_b32 s41, s3, 10                 ; j*1024
    s_add_u32 s41, s41, 49152
    v_add_u32 v7, s41, v5
    s_mov_b64 exec, s[50:51]
    """)
    for ww in range(8):
        A(f"ds_read_b128 {v(8+8*ww,4)}, v7 offset:{ww*2048}")
        A(f"ds_read_b128 {v(12+8*ww,4)}, v7 offset:{ww*2048+512}")
    A("s_waitcnt lgkmcnt(0)")
    for i in range(0, 8, 2):
        for a_, b_ in ((8, 16), (24, 32), (40, 48), (56, 64)): A(f"v_pk_add_f32 {v(a_+i,2)}, {v(a_+i,2)}, {v(b_+i,2)}")
    for i in range(0, 8, 2):
        A(f"v_pk_add_f32 {v(8+i,2)}, {v(8+i,2)}, {v(24+i,2)}")
        A(f"v_pk_add_f32 {v(40+i,2)}, {v(40+i,2)}, {v(56+i,2)}")
    for i in range(0, 8, 2): A(f"v_pk_add_f32 {v(8+i,2)}, {v(8+i,2)}, {v(40+i,2)}")
    for i in range(4): A(f"v_cvt_pk_bf16_f32 v{16+i}, v{8+2*i}, v{9+2*i}")
    A(f"""
    s_lshl_b32 s41, s37, 11
    s_lshl_b32 s42, s3, 9
    s_add_u32 s41, s41, s42
    s_add_u32 s41, s41, 1024
    buffer_store_dwordx4 v[16:19], v5, s[24:27], s41 offen sc1
    s_mov_b64 exec, -1
    """)
    A.label(f"{N}_xsig")
    done = A.newlabel("xsig")
    A(f"""
    s_waitcnt vmcnt(0)
    s_barrier
    s_cmp_lg_u32 s3, 0
    s_cbranch_scc1 {done}
    """)
    epoch_use(A, N)
    A(f"""
    s_lshl_b32 s41, s37, 4
    s_lshl_b32 s42, s36, 3
    s_add_u32 s41, s41, s42
    s_add_u32 s41, s41, {FLG_KVR}
    s_lshr_b32 s42, s37, 2
    s_lshl_b32 s42, s42, 7
    s_and_b32 s43, s37, 3
    s_lshl_b32 s43, s43, 3
    s_add_u32 s42, s42, s43
    s_add_u32 s42, s42, {FLG_XN}
    s_cmp_eq_u32 s36, 2
    s_cselect_b32 s41, s42, s41
    s_cselect_b32 s42, 1, 0xff
    v_lshlrev_b32 v5, 10, v1
    v_add_u32 v5, s41, v5
    v_mov_b32 v124, s{EP}
    v_mov_b32 v125, s{EP+1}
    s_mov_b32 exec_lo, s42
    s_mov_b32 exec_hi, 0
    global_store_dwordx2 v5, v[124:125], s[12:13] sc1
    s_mov_b64 exec, -1
    """)
    A.label(done)

ACC, AF, BF, DBF, XR_, TD, TB_ = 16, 80, 96, 96, 120, 124, 126
DR = 3
def gen_g(A, name, prio, lowprio):
    V = VM(A)
    A(f"""
    s_setprio {lowprio}
    s_sub_u32 s2, s2, 256
    s_load_dwordx4 s[4:7], s[0:1], 48
    s_load_dwordx4 s[8:11], s[0:1], 64
    s_load_dwordx2 s[56:57], s[0:1], 0     ; x
    s_load_dwordx2 s[58:59], s[0:1], 32    ; wo
    v_lshlrev_b32 v{TB_}, 7, v1            ; lane*128
    s_and_b32 s61, s2, 31
    s_lshr_b32 s60, s2, 5                  ; nb
    s_waitcnt lgkmcnt(0)
    """)
    srd_off(A, 28, 12, 13, WS_AT, AT_BYTES)
    srd(A, 64, 8, 9, 1792 * 1024)
    srd(A, 32, 58, 59, 512 * 1024)
    A(f"""
    s_cmp_ge_u32 s2, 224
    s_cbranch_scc1 {name}_down
    s_mov_b32 s53, s2
    """)
    A(f"""
    s_and_b32 s36, s53, 7
    s_lshr_b32 s37, s53, 3
    s_and_b32 s38, s36, 3
    s_lshl_b32 s38, s38, 2
    s_and_b32 s39, s37, 3
    s_add_u32 s38, s38, s39                ; mb
    s_lshr_b32 s39, s36, 2
    s_mul_i32 s39, s39, 7
    s_lshr_b32 s37, s37, 2
    s_add_u32 s39, s39, s37                ; fb
    s_and_b32 s36, s3, 1                   ; wm
    s_lshr_b32 s37, s3, 1                  ; wf 0..3
    """)
    srd(A, 16, 4, 5, 512 * 3584)
    srd(A, 20, 6, 7, 512 * 3584)
    srd_off(A, 24, 12, 13, WS_XN, 2048 * 1024)
    A(f"""
    v_lshrrev_b32 v7, 4, v1
    v_bfe_u32 v8, v1, 2, 2
    v_xor_b32 v8, v8, v7
    s_mov_b32 s40, 3584
    v_mul_lo_u32 v7, v7, s40
    v_lshl_add_u32 v7, v8, 6, v7
    v_and_b32 v8, 3, v1
    v_lshl_add_u32 v7, v8, 4, v7
    s_lshl_b32 s41, s38, 2
    s_add_u32 s41, s41, s37
    s_lshl_b32 s41, s41, 15
    s_lshl_b32 s42, s36, 10
    s_add_u32 s41, s41, s42
    s_mul_i32 s42, s3, {4*3584}
    s_lshl_b32 s43, s39, 8
    s_add_u32 s42, s42, s43
    s_lshl_b32 s44, s3, 10
    """)
    def gX(slot, st): return ([f"s_add_u32 m0, s44, {slot}"], "buffer_load_dwordx4 v6, s[24:27], s41 offen lds", ("S", st), ["s_add_u32 s41, s41, 2048"])
    def gW(slot, st): return [
          ([f"s_add_u32 m0, s44, {slot + 8192}"], "buffer_load_dwordx4 v7, s[16:19], s42 offen lds", ("S", st), []),
          ([f"s_add_u32 m0, s44, {slot + 16384}"], "buffer_load_dwordx4 v7, s[20:23], s42 offen lds", ("S", st), [f"s_add_u32 s42, s42, {32*3584}"])]
    def emit4(g):
        for x in g[0]: A(x)
        if len(g[0]) == 1: A("s_nop 0")
        V.op(g[1], g[2])
        for x in g[3]: A(x)
    for sl in range(3):
        for g in gW(sl*STG, sl): emit4(g)
    A(f"""
    v_bfe_u32 v8, v1, 2, 2
    v_lshl_add_u32 v9, v3, 3, v8
    v_lshlrev_b32 v9, 8, v9
    v_bfe_u32 v10, v1, 4, 1
    v_lshl_add_u32 v9, v10, 5, v9
    v_and_b32 v10, 3, v1
    v_lshl_add_u32 v9, v10, 3, v9
    v_add_u32 v9, 8192, v9
    v_xor_b32 v10, s37, v8
    v_lshl_add_u32 v10, v10, 6, v9         ; A addr
    s_lshl_b32 s46, s36, 12
    v_add_u32 v12, s46, v6                 ; B addr
    s_lshl_b32 s49, s38, 7
    s_add_u32 s49, s49, {FLG_XN}
    """)
    poll(A, name, "s49", 4, need_epoch=True)
    for sl in range(3): emit4(gX(sl*STG, sl))
    def acc(gu, mt): return ACC + 16*(gu*2 + mt)
    def reads(ks, slot):
        L = []
        for mt in range(2):
            L.append(f"ds_read_b128 {v(BF+8*ks+4*mt,4)}, v12 offset:{slot*STG + mt*2048 + ks*1024}")
        for gu in range(2):
            fr = AF + 8*ks + 4*gu
            off = slot*STG + gu*8192 + ks*4096
            L.append(f"ds_read_b64_tr_b16 {v(fr,2)}, v10 offset:{off}")
            L.append(f"ds_read_b64_tr_b16 {v(fr+2,2)}, v10 offset:{off+1024}")
        return L
    def mf(ks, first):
        return [f"v_mfma_f32_32x32x16_bf16 {v(acc(gu,mt),16)}, {v(AF+8*ks+4*gu,4)}, {v(BF+8*ks+4*mt,4)}, {'0' if first else v(acc(gu,mt),16)}"
                for gu in range(2) for mt in range(2)]
    V.wait([("S", 0)])
    A("s_barrier")
    for x in reads(0, 0): A(x)
    A.stamp(1)
    for st in range(16):
        slot = st % 3
        A("s_waitcnt lgkmcnt(0)")
        R1 = reads(1, slot); m0 = mf(0, st == 0)
        ri = 0
        for i in range(4):
            A(m0[i])
            for _ in range(2 if i < 2 else 1):
                if ri < len(R1): A(R1[ri]); ri += 1
        if st < 15:
            V.wait([("S", st+1)], " lgkmcnt(0)")
            A("s_barrier")
        else:
            A("s_waitcnt lgkmcnt(0)")
        G = ([gX(slot*STG, st+3)] + gW(slot*STG, st+3)) if st + 3 < 16 else []
        m1 = mf(1, False); R0 = reads(0, (st+1) % 3) if st < 15 else []
        ri = 0
        for i in range(4):
            A(m1[i])
            for _ in range(2 if i < 2 else 1):
                if ri < len(R0): A(R0[ri]); ri += 1
            if i < len(G): emit4(G[i])
    A(f"s_setprio {prio}")
    A.nop(16)
    A.stamp(2)
    c0 = -2.0 * math.log2(math.e) * math.sqrt(2.0 / math.pi)
    c1 = c0 * 0.044715
    A(f"""
    s_lshl_b32 s48, s38, 2
    s_lshl_b32 s49, s36, 1
    s_add_u32 s48, s48, s49
    s_mul_i32 s48, s48, {144*1024}
    s_lshl_b32 s49, s39, 3
    s_lshl_b32 s53, s37, 1
    s_add_u32 s49, s49, s53
    s_add_u32 s49, s49, 32
    s_lshl_b32 s49, s49, 10
    s_add_u32 s48, s48, s49
    v_mov_b32 v12, {f2u(c0)}
    v_mov_b32 v14, {f2u(c1)}
    v_mov_b32 v10, 1.0
    """)
    T = AF
    for mt in range(2):
        G_, U = acc(0, mt), acc(1, mt)
        for i0 in range(0, 16, 8):
            R = range(0, 8, 2)
            for i in R: A(f"v_pk_mul_f32 {v(T+i,2)}, {v(G_+i0+i,2)}, {v(G_+i0+i,2)}")
            for i in R: A(f"v_pk_fma_f32 {v(T+i,2)}, {v(T+i,2)}, v[14:15], v[12:13] op_sel_hi:[1,0,0]")
            for i in R: A(f"v_pk_mul_f32 {v(T+i,2)}, {v(T+i,2)}, {v(G_+i0+i,2)}")
            for i in range(8): A(f"v_exp_f32 v{T+i}, v{T+i}")
            for i in R: A(f"v_pk_mul_f32 {v(G_+i0+i,2)}, {v(G_+i0+i,2)}, {v(U+i0+i,2)}")
            for i in R: A(f"v_pk_add_f32 {v(T+i,2)}, {v(T+i,2)}, v[10:11] op_sel_hi:[1,0]")
            for i in range(8): A(f"v_rcp_f32 v{T+i}, v{T+i}")
            A("s_nop 0")
            for i in R: A(f"v_pk_mul_f32 {v(G_+i0+i,2)}, {v(G_+i0+i,2)}, {v(T+i,2)}")
        for i in range(8):
            A(f"v_cvt_pk_bf16_f32 v{U+i}, v{G_+2*i}, v{G_+2*i+1}")
    A(f"s_setprio {lowprio}")
    for mt in range(2):
        U = acc(1, mt)
        A(f"s_add_u32 s49, s48, {mt*144*1024}")
        A(f"buffer_store_dwordx4 {v(U,4)}, v6, s[28:31], s49 offen sc1")
        A(f"buffer_store_dwordx4 {v(U+4,4)}, v6, s[28:31], s49 offen offset:1024 sc1")
    A(f"""s_lshl_b32 s49, s38, 7
    s_lshl_b32 s53, s39, 3
    s_add_u32 s49, s49, s53
    s_add_u32 s49, s49, {FLG_H}""")
    signal(A, name, "s49")
    A.stamp(3)
    A(f"s_branch {name}_down2")
    A.label(f"{name}_down")
    A(f"""s_and_b32 s49, s2, 7
    s_lshl_b32 s49, s49, 10
    s_add_u32 s49, s49, {FLG_KVR}""")
    poll_kv(A, name, "s49")
    A("s_sleep 64")
    A(f"v_lshlrev_b32 v{TB_}, 7, v1")
    A(f"""
    s_sub_u32 s53, s2, 224
    s_lshr_b32 s53, s53, 3
    s_lshl_b32 s53, s53, 3
    s_add_u32 s53, s53, s3                 ; 0..31
    s_mul_i32 s54, s53, {56*1024}
    s_lshl_b32 s55, s53, 14
    """)
    for j in range(7):
        A(f"s_add_u32 s48, s54, {j*8192}")
        A(f"buffer_load_dword v{TD}, v{TB_}, s[64:67], s48 offen")
        A("s_waitcnt vmcnt(2)")
    for j in range(2):
        A(f"s_add_u32 s48, s55, {j*8192}")
        A(f"buffer_load_dword v{TD}, v{TB_}, s[32:35], s48 offen")
    A.label(f"{name}_down2")
    V.reset()
    A(f"""
    s_mov_b32 s37, s61
    s_mov_b32 s36, s60
    """)
    srd(A, 16, 56, 57, 2048 * 1024)
    srd(A, 20, 10, 11, 2048 * 1024)
    A(f"""
    v_lshrrev_b32 v9, 3, v1
    v_bfe_u32 v10, v1, 2, 1
    v_bfe_u32 v11, v1, 4, 1
    v_xor_b32 v10, v10, v11
    v_lshlrev_b32 v9, 10, v9
    v_lshl_add_u32 v9, v10, 6, v9
    v_and_b32 v10, 3, v1
    v_lshl_add_u32 v9, v10, 4, v9
    s_lshl_b32 s40, s36, 7
    v_add_u32 v9, s40, v9
    s_mul_i32 s41, s3, {224*1024}
    s_mul_i32 s42, s3, {14*1024}
    s_add_u32 s42, s42, {32*1024}
    s_lshl_b32 s43, s37, 1
    s_mul_i32 s43, s43, {144*1024}
    s_add_u32 s42, s42, s43
    s_mul_i32 s44, s3, {4*2048}
    v_bfe_u32 v10, v1, 2, 2
    v_lshl_add_u32 v11, v3, 2, v10
    v_lshlrev_b32 v11, 7, v11
    v_bfe_u32 v12, v1, 4, 1
    v_lshl_add_u32 v11, v12, 5, v11
    v_and_b32 v12, 3, v1
    v_lshl_add_u32 v11, v12, 3, v11
    v_add_u32 v11, s44, v11
    v_lshrrev_b32 v10, 1, v10
    v_lshl_add_u32 v12, v10, 6, v11
    v_xor_b32 v10, 1, v10
    v_lshl_add_u32 v13, v10, 6, v11
    """)
    WR = 4
    def issueW(k, srdW, tag):
        slot = k % WR
        return [([f"s_add_u32 m0, s44, {slot*2048 + j*1024}", f"s_add_u32 s46, s41, {j*8192}"], f"buffer_load_dwordx4 v9, s[{srdW}:{srdW+3}], s46 offen lds", tag, ["s_add_u32 s41, s41, 16384"] if j == 1 else []) for j in range(2)]
    def issueB(k, tag):
        slot = k % DR
        return [([f"s_add_u32 s46, s42, {mt*144*1024}", "s_nop 0"], f"buffer_load_dwordx4 {v(DBF+8*slot+4*mt,4)}, v6, s[28:31], s46 offen", tag, ["s_add_u32 s42, s42, 1024"] if mt == 1 else []) for mt in range(2)]
    def wreads(k):
        slot = k % WR; ab = AF + 8*(k % 2); L = []
        for nt in range(2):
            fr = ab + 4*nt; off = slot*2048
            L.append(f"ds_read_b64_tr_b16 {v(fr,2)}, v{12+nt} offset:{off}")
            L.append(f"ds_read_b64_tr_b16 {v(fr+2,2)}, v{12+nt} offset:{off+1024}")
        return L
    def dmf(k, first):
        ab = AF + 8*(k % 2); L = []
        for nt in range(2):
            for mt in range(2):
                D = ACC + 16*(nt*2+mt)
                L.append(f"v_mfma_f32_32x32x16_bf16 {v(D,16)}, {v(ab+4*nt,4)}, {v(DBF+8*(k % DR)+4*mt,4)}, {'0' if first else v(D,16)}")
        return L
    NH = 14
    for k in range(3):
        for g in issueW(k, 64, ("W", k)): emit4(g)
    A(f"""
    s_lshr_b32 s47, s3, 1
    s_and_b32 s48, s47, 1
    s_lshr_b32 s47, s47, 1
    s_and_b32 s50, s3, 1
    s_lshl_b32 s49, s37, 6
    s_lshl_b32 s53, s48, 5
    s_add_u32 s49, s49, s53
    s_lshl_b32 s49, s49, 10
    s_lshl_b32 s53, s36, 7
    s_add_u32 s49, s49, s53
    s_lshl_b32 s53, s47, 6
    s_add_u32 s49, s49, s53
    s_lshl_b32 s53, s50, 5
    s_add_u32 s49, s49, s53
    v_lshlrev_b32 v14, 10, v2
    v_add_u32 v14, s49, v14
    v_lshl_add_u32 v15, v3, 3, v14
    """)
    for j in range(2):
        V.op(f"buffer_load_dwordx2 {v(XR_+2*j,2)}, v15, s[16:19], 0 offen offset:{16*j}", "x")
    A(f"""s_lshr_b32 s49, s37, 1
    s_lshl_b32 s49, s49, 7
    s_add_u32 s49, s49, {FLG_H}""")
    poll(A, name, "s49", 14, need_epoch=True)
    A.stamp(4)
    for k in range(2):
        for g in issueB(k, ("B", k)): emit4(g)
    V.wait([("W", 0)])
    for x in wreads(0): A(x)
    for k in range(NH):
        items = [("B", k)] + ([("W", k+1)] if k + 1 < NH else [])
        V.wait(items, " lgkmcnt(0)")
        Rn = wreads(k+1) if k + 1 < NH else []
        Gi = (issueB(k+2, ("B", k+2)) if k + 2 < NH else []) + (issueW(k+3, 64, ("W", k+3)) if k + 3 < NH else [])
        M = dmf(k, k == 0)
        for i in range(4):
            A(M[i])
            if i < len(Rn): A(Rn[i])
            if i < len(Gi): emit4(Gi[i])
    A.stamp(5)
    A.nop(16)
    A("s_waitcnt lgkmcnt(0)")
    A("s_barrier")
    l1 = A.newlabel(name + "_r1"); l2 = A.newlabel(name + "_r2")
    A(f"""
    s_and_b32 s50, s3, 3
    s_lshl_b32 s50, s50, 14
    v_add_u32 v7, s50, v6
    s_cmp_lt_u32 s3, 4
    s_cbranch_scc1 {l1}
    """)
    for t in range(4):
        for qd in range(4):
            A(f"ds_write_b128 v7, {v(ACC+16*t+4*qd,4)} offset:{t*4096+qd*1024}")
    A.label(l1)
    A(f"""s_waitcnt lgkmcnt(0)
    s_barrier
    s_cmp_ge_u32 s3, 4
    s_cbranch_scc1 {l2}
    """)
    for half in range(2):
        for t in range(2):
            for qd in range(4):
                A(f"ds_read_b128 {v(80+16*t+4*qd,4)}, v7 offset:{(2*half+t)*4096+qd*1024}")
        A("s_waitcnt lgkmcnt(0)")
        for i in range(0, 32, 2):
            A(f"v_pk_add_f32 {v(ACC+32*half+i,2)}, {v(ACC+32*half+i,2)}, {v(80+i,2)}")
    for t in range(4):
        for qd in range(4):
            A(f"ds_write_b128 v7, {v(ACC+16*t+4*qd,4)} offset:{t*4096+qd*1024}")
    A.label(l2)
    A(f"""s_waitcnt lgkmcnt(0)
    s_barrier
    s_lshr_b32 s50, s3, 1
    s_lshl_b32 s50, s50, 12
    s_and_b32 s53, s3, 1
    s_lshl_b32 s53, s53, 11
    s_add_u32 s50, s50, s53
    v_add_u32 v7, s50, v6
    """)
    for ww in range(4):
        for qd in range(2):
            A(f"ds_read_b128 {v(ACC+8*ww+4*qd,4)}, v7 offset:{ww*16384+qd*1024}")
    for j in range(2):
        A(f"v_lshlrev_b32 v{80+4*j}, 16, v{XR_+2*j}")
        A(f"v_and_b32 v{81+4*j}, 0xffff0000, v{XR_+2*j}")
        A(f"v_lshlrev_b32 v{82+4*j}, 16, v{XR_+1+2*j}")
        A(f"v_and_b32 v{83+4*j}, 0xffff0000, v{XR_+1+2*j}")
    A("s_waitcnt lgkmcnt(0)")
    A("s_barrier")
    A(f"""
    s_lshl_b32 s41, s3, 16
    s_lshl_b32 s44, s3, 13
    """)
    for j in range(8):
        A(f"""s_add_u32 m0, s44, {j*1024}
        s_add_u32 s46, s41, {j*8192}
        buffer_load_dwordx4 v9, s[32:35], s46 offen lds""")
    for i in range(0, 8, 2):
        A(f"v_pk_add_f32 {v(ACC+i,2)}, {v(ACC+i,2)}, {v(ACC+8+i,2)}")
        A(f"v_pk_add_f32 {v(ACC+16+i,2)}, {v(ACC+16+i,2)}, {v(ACC+24+i,2)}")
    for i in range(0, 8, 2):
        A(f"v_pk_add_f32 {v(ACC+i,2)}, {v(ACC+i,2)}, {v(80+i,2)}")
    for i in range(0, 8, 2):
        A(f"v_pk_add_f32 {v(ACC+i,2)}, {v(ACC+i,2)}, {v(ACC+16+i,2)}")
    A(f"""
    s_lshr_b32 s47, s3, 2                  ; nt
    s_bfe_u32 s48, s3, 0x10001             ; mt
    s_and_b32 s50, s3, 1                   ; kh
    v_bfe_u32 v10, v1, 2, 2                ; r
    v_lshl_add_u32 v11, v3, 2, v10         ; 4h + r
    v_lshlrev_b32 v11, 7, v11
    v_bfe_u32 v12, v1, 4, 1
    v_lshl_add_u32 v11, v12, 5, v11
    v_and_b32 v12, 3, v1
    v_lshl_add_u32 v11, v12, 3, v11
    v_lshrrev_b32 v10, 1, v10
    v_xor_b32 v10, s47, v10
    v_lshl_add_u32 v11, v10, 6, v11
    s_lshl_b32 s53, s50, 15
    v_add_u32 v11, s53, v11
    s_mul_i32 s42, s48, {144*1024}
    s_add_u32 s42, s42, s43
    s_lshl_b32 s53, s50, 14
    s_add_u32 s42, s42, s53
    s_waitcnt vmcnt(0)
    s_barrier
    """)
    WA, OB, OD = 40, 104, 24
    for st in range(16):
        A(f"ds_read_b64_tr_b16 {v(WA+4*st,2)}, v11 offset:{st*2048}")
        A(f"ds_read_b64_tr_b16 {v(WA+4*st+2,2)}, v11 offset:{st*2048+1024}")
    A(f"""s_lshl_b32 s49, s37, 7
    s_add_u32 s49, s49, {FLG_O}""")
    A("s_waitcnt lgkmcnt(0)")
    poll(A, name, "s49", 8)
    A.stamp(6)
    V.reset()
    NB = 6
    def ob(st):
        A(f"s_add_u32 s46, s42, {(st//4)*4096}")
        V.op(f"buffer_load_dwordx4 {v(OB+4*(st%NB),4)}, v6, s[28:31], s46 offen offset:{(st%4)*1024}", ("O", st))
    for st in range(NB): ob(st)
    for st in range(16):
        V.wait([("O", st)])
        A(f"v_mfma_f32_32x32x16_bf16 {v(OD,16)}, {v(WA+4*st,4)}, {v(OB+4*(st%NB),4)}, {'0' if st == 0 else v(OD,16)}")
        if st + NB < 16: ob(st + NB)
    A(f"""
    s_lshl_b32 s41, s3, 11
    v_add_u32 v7, s41, v6
    s_xor_b32 s41, s41, 2048
    v_add_u32 v4, s41, v6
    s_nop 7
    s_nop 3
    s_cmp_eq_u32 s50, 0
    s_cbranch_scc1 {name}_nosw2
    """)
    for i in range(8): A(f"v_swap_b32 v{OD+i}, v{OD+8+i}")
    A.label(f"{name}_nosw2")
    A(f"""
    ds_write_b128 v7, {v(OD+8,4)}
    ds_write_b128 v7, {v(OD+12,4)} offset:1024
    """)
    for i in range(0, 8, 2): A(f"v_pk_add_f32 {v(ACC+i,2)}, {v(ACC+i,2)}, {v(OD+i,2)}")
    A(f"""
    s_waitcnt lgkmcnt(0)
    s_barrier
    ds_read_b128 {v(40,4)}, v4
    ds_read_b128 {v(44,4)}, v4 offset:1024
    s_waitcnt lgkmcnt(0)
    """)
    for i in range(0, 8, 2): A(f"v_pk_add_f32 {v(ACC+i,2)}, {v(ACC+i,2)}, {v(40+i,2)}")
    for i in range(4):
        A(f"v_cvt_pk_bf16_f32 v{96+i}, v{ACC+2*i}, v{ACC+2*i+1}")
    A(f"""s_nop 1
    v_permlane32_swap_b32 v96, v98
    v_permlane32_swap_b32 v97, v99
    v_lshl_add_u32 v15, v3, 4, v14
    buffer_store_dwordx4 v[96:99], v15, s[20:23], 0 offen
    """)
    A.stamp_flush(2, 12, 13, 3, 1, 8, t0=20)

def build(path, stamps=False, **kw):
    HEADER = open("parallel_sum__grouped_kv_mqa__glu_gated_geglu__prompt.s.ref").read().split("; Override launch")[0]
    t, d = gen_mega(stamps=stamps, **kw)
    out = HEADER + "; @launch grid=(512,1,1) block=(512,1,1) lds=81920\n" + '.amdgcn_target "amdgcn-amd-amdhsa--gfx950"\n.text\n' + t + '.section .rodata,"a"\n.p2align 6\n' + d
    open(path, "w").write(out)
if __name__ == "__main__":
    build("m11.s"); build("m11s.s", stamps=True)
```

```python
from asmlib import *
import math, struct
from kgemm import VM
def f2u(x): return struct.unpack("<I", struct.pack("<f", x))[0]
WS_XN   = 0
WS_KV   = 2 << 20
WS_KMAX = WS_KV + (128 << 10)
WS_FLG  = 3 << 20
FLG_KVR = WS_FLG + 16384
FLG_KV, FLG_XN, FLG_H, FLG_O = WS_FLG, WS_FLG + 1024, WS_FLG + 4096, WS_FLG + 8192
WS_AT   = 6 << 20
AT_BYTES = 64 * 144 * 1024
SLOT = 16384
STG = 24576
EP = 68

def get_epoch(A, name):
    lab = A.newlabel(name + "_ep")
    A("v_mov_b32 v126, 0")
    A.label(lab)
    A(f"""
    global_load_dwordx2 v[124:125], v126, s[14:15] sc1
    s_waitcnt vmcnt(0)
    v_readfirstlane_b32 s{EP}, v124
    v_readfirstlane_b32 s{EP+1}, v125
    s_or_b32 s46, s{EP}, s{EP+1}
    s_cmp_eq_u32 s46, 0
    s_cbranch_scc1 {lab}
    """)

def epoch_async(A, name):
    done = A.newlabel(name + "_eed")
    A(f"""
    s_cmp_lg_u32 s3, 0
    s_cbranch_scc1 {done}
    v_mov_b32 v126, 0
    global_load_dwordx2 v[124:125], v126, s[14:15] sc1
    """)
    A.label(done)

def epoch_use(A, name):
    ok = A.newlabel(name + "_eok")
    A(f"""
    v_readfirstlane_b32 s{EP}, v124
    v_readfirstlane_b32 s{EP+1}, v125
    s_or_b32 s46, s{EP}, s{EP+1}
    s_cmp_lg_u32 s46, 0
    s_cbranch_scc1 {ok}
    """)
    get_epoch(A, name)
    A.label(ok)

def poll(A, name, off_s, n, need_epoch=False):
    lab = A.newlabel(name + "_poll"); done = A.newlabel(name + "_polled")
    A(f"""
    s_cmp_lg_u32 s3, 0
    s_cbranch_scc1 {done}
    """)
    if need_epoch: get_epoch(A, name)
    A(f"""
    v_lshlrev_b32 v4, 3, v1
    v_add_u32 v4, {off_s}, v4
    s_mov_b64 s[46:47], exec
    s_mov_b32 exec_lo, {hex(((1 << n) - 1) & 0xffffffff)}
    s_mov_b32 exec_hi, {hex(((1 << n) - 1) >> 32)}
    """)
    A.label(lab)
    A(f"""
    global_load_dwordx2 v[124:125], v4, s[12:13] sc1
    s_waitcnt vmcnt(0)
    v_cmp_ne_u64 vcc, s[{EP}:{EP+1}], v[124:125]
    s_cmp_eq_u64 vcc, 0
    s_cbranch_scc1 {lab}_ok
    s_sleep 2
    s_branch {lab}
    """)
    A.label(lab + "_ok")
    A("s_mov_b64 exec, s[46:47]")
    A.label(done)
    A("s_barrier")

def poll_kv(A, name, off_s, have_async=False):
    lab = A.newlabel(name + "_pollkv"); done = A.newlabel(name + "_polledkv")
    A(f"""
    s_cmp_lg_u32 s3, 0
    s_cbranch_scc1 {done}
    """)
    if have_async: epoch_use(A, name)
    else: get_epoch(A, name)
    A(f"""
    v_add_u32 v4, {off_s}, v6
    """)
    A.label(lab)
    A(f"""
    global_load_dwordx4 v[124:127], v4, s[12:13] sc1
    s_waitcnt vmcnt(0)
    v_cmp_ne_u64 vcc, s[{EP}:{EP+1}], v[124:125]
    v_cmp_ne_u64 s[46:47], s[{EP}:{EP+1}], v[126:127]
    s_or_b64 vcc, vcc, s[46:47]
    s_cmp_eq_u64 vcc, 0
    s_cbranch_scc1 {done}
    s_sleep 3
    s_branch {lab}
    """)
    A.label(done)
    A("s_barrier")

def signal(A, name, off_s, need_epoch=False):
    done = A.newlabel(name + "_sig")
    A(f"""
    s_waitcnt vmcnt(0)
    s_barrier
    s_cmp_lg_u32 s3, 0
    s_cbranch_scc1 {done}
    """)
    if need_epoch: get_epoch(A, name)
    A(f"""
    v_mov_b32 v4, {off_s}
    v_mov_b32 v124, s{EP}
    v_mov_b32 v125, s{EP+1}
    s_mov_b64 s[46:47], exec
    s_mov_b64 exec, 1
    global_store_dwordx2 v4, v[124:125], s[12:13] sc1
    s_mov_b64 exec, s[46:47]
    """)
    A.label(done)

def dpp_sum8(A, r):
    for ctrl in ("quad_perm:[1,0,3,2]", "quad_perm:[2,3,0,1]", "row_half_mirror"):
        A("s_nop 1")
        A(f"v_add_f32_dpp v{r}, v{r}, v{r} {ctrl} row_mask:0xf bank_mask:0xf")

def lane_reduce_max(A, vr, tmp_s0, out_s):
    for sh in (1,2,4,8):
        A("s_nop 1")
        A(f"v_max_f32_dpp v{vr}, v{vr}, v{vr} row_shr:{sh} row_mask:0xf bank_mask:0xf")
    A("s_nop 1")
    A(f"""v_readlane_b32 s{tmp_s0}, v{vr}, 15
    v_readlane_b32 s{tmp_s0+1}, v{vr}, 31
    v_readlane_b32 s{tmp_s0+2}, v{vr}, 47
    v_readlane_b32 s{tmp_s0+3}, v{vr}, 63
    s_nop 1
    v_mov_b32 v{vr}, s{tmp_s0}
    v_max_f32 v{vr}, s{tmp_s0+1}, v{vr}
    v_max_f32 v{vr}, s{tmp_s0+2}, v{vr}
    v_max_f32 v{vr}, s{tmp_s0+3}, v{vr}
    s_nop 0
    v_readfirstlane_b32 s{out_s}, v{vr}""")

S0, S1, O, C, P, Q, Kf, Vf = 16, 32, 48, 64, 80, 88, 92, 100
vKc, vKn, vVc, vVn, vKl, vVl = 116, 117, 118, 119, 120, 121

def att_stage(A, i):
    par = i % 2
    Sc, Sn = (S0, S1) if par == 0 else (S1, S0)
    kold, knxt = Kf + 4*par, Kf + 4*(1-par)
    vcur, vprev = Vf + 8*par, Vf + 8*(1-par)
    E = lambda k: A(f"v_exp_f32 v{Sc+k}, v{Sc+k}")
    Cv = lambda k: A(f"v_cvt_pk_bf16_f32 v{P+k}, v{Sc+2*k}, v{Sc+2*k+1}")
    M = lambda D, a_, b_, c_: A(f"v_mfma_f32_32x32x16_bf16 {v(D,16)}, {v(a_,4)}, {v(b_,4)}, {v(c_,16)}")
    E(0); E(1)
    M(O, vprev+4, P+4, O)
    for k in range(2,6): E(k)
    if i == 6:
        A("s_waitcnt vmcnt(0)")
        A("s_barrier")
        A.chunk_issue()
    A("s_waitcnt lgkmcnt(0)")
    M(Sn, knxt, Q, C)
    kt = i + 2
    A(f"ds_read_b128 {v(kold,4)}, v{vKc if kt < 8 else vKn} offset:{(kt % 8)*2048}")
    vt = i + 1
    va = vVc if vt < 8 else vVn
    A("s_mov_b64 exec, s[60:61]")
    A(f"ds_read_b128 {v(vprev,4)}, v{va} offset:{(vt % 8)*2048 + 1024}")
    A(f"ds_read_b128 {v(vprev+4,4)}, v{va} offset:{(vt % 8)*2048 + 1536}")
    A("s_mov_b64 exec, -1")
    E(6); E(7)
    for k in range(4): Cv(k)
    E(8); E(9)
    M(O, vcur, P, O)
    for k in range(10,16): E(k)
    for k in range(4,8): Cv(k)

def gen_mega(name="parallel_sum__grouped_kv_mqa__glu_gated_geglu__prompt_kernel", stamps=False, prio=2, lowprio=0):
    A = Asm(); A.stamps = stamps
    N = "m"
    A.raw(kernel_header(name).rstrip("\n"))
    A(f"""
    s_cmp_ge_u32 s2, 512
    s_cbranch_scc1 {N}_end
    s_xor_b32 s2, s2, 256
    """)
    A.stamp(0)
    A(f"""
    s_load_dwordx2 s[4:5], s[0:1], 0       ; x
    s_load_dwordx2 s[6:7], s[0:1], 8       ; wq
    s_load_dwordx4 s[8:11], s[0:1], 16
    s_load_dwordx4 s[12:15], s[0:1], 80
    v_and_b32 v1, 63, v0                   ; lane
    v_lshrrev_b32 v5, 6, v0                ; wave
    s_cmp_lt_u32 s2, 256
    v_readfirstlane_b32 s3, v5
    s_cselect_b32 s41, 3, 4
    s_cselect_b32 s42, 7, 15
    s_cselect_b32 s43, 7, 8
    s_cselect_b32 s44, 31, 63
    s_cselect_b32 s45, 16, 15
    s_cselect_b32 s46, 13, 12
    s_lshl_b32 s43, 1, s43
    s_and_b32 s37, s2, s44
    s_lshl_b32 s38, s37, s45
    s_lshl_b32 s39, s3, s46
    s_add_u32 s38, s38, s39
    v_lshrrev_b32 v4, s41, v1
    v_and_b32 v5, s42, v1                  ; c
    v_lshlrev_b32 v7, 10, v4
    v_lshl_add_u32 v7, v5, 4, v7
    s_mov_b32 s18, {2048*1024}
    s_mov_b32 s19, 0x00020000
    s_waitcnt lgkmcnt(0)
    s_mov_b32 s16, s4
    s_and_b32 s17, s5, 0xffff
    s_cmp_gt_u32 s2, 447
    s_cbranch_scc1 {N}_nox
    buffer_load_dwordx4 v[8:11], v7, s[16:19], s38 offen
    s_add_u32 s38, s38, s43
    buffer_load_dwordx4 v[12:15], v7, s[16:19], s38 offen
    s_add_u32 s38, s38, s43
    buffer_load_dwordx4 v[16:19], v7, s[16:19], s38 offen
    s_add_u32 s38, s38, s43
    buffer_load_dwordx4 v[20:23], v7, s[16:19], s38 offen
    s_add_u32 s38, s38, s43
    {N}_nox:
    v_and_b32 v2, 31, v0                   ; m
    v_bfe_u32 v3, v0, 5, 1                 ; h
    v_lshlrev_b32 v6, 4, v1                ; lane*16
    s_mov_b32 s46, s12
    s_mov_b32 s47, s13
    s_mov_b32 s12, s14
    s_mov_b32 s13, s15                     ; s[12:13] = ws
    s_mov_b32 s14, s46
    s_mov_b32 s15, s47                     ; s[14:15] = dbg
    s_cmp_lt_u32 s2, 256
    s_cbranch_scc1 {N}_att
    s_cmp_gt_u32 s2, 447
    s_cbranch_scc1 {N}_gsleep
    """)
    gen_kvx(A, N)
    A(f"s_branch {N}_gmain2")
    A.label(f"{N}_gsleep")
    A(f"""
    s_cmp_lg_u32 s3, 0
    s_cbranch_scc1 {N}_gsl2
    """)
    get_epoch(A, N)
    A.label(f"{N}_gsl2")
    A("s_barrier")
    A.label(f"{N}_gmain2")
    gen_g(A, N, prio, lowprio)
    A("s_endpgm")
    A.label(f"{N}_att")
    A("s_setprio 1")
    A("s_lshr_b32 s36, s2, 5                  ; hg")
    for j in range(4, 8):
        A(f"buffer_load_dwordx4 {v(8+4*j,4)}, v7, s[16:19], s38 offen offset:{(j-4)*128}")
    A(f"""
    s_and_b32 s38, s3, 1                   ; rh
    s_bfe_u32 s39, s3, 0x10001             ; hp
    s_lshr_b32 s40, s3, 2                  ; kh
    """)
    srd(A, 20, 6, 7, 512 * 1024)
    A(f"""
    v_bfe_u32 v40, v1, 2, 1                ; pos
    v_bfe_u32 v41, v1, 4, 1                ; (r8>>1)&1
    v_xor_b32 v40, v40, v41                ; q
    v_lshlrev_b32 v127, 6, v40
    v_and_b32 v40, 3, v1
    v_lshl_add_u32 v127, v40, 4, v127
    v_lshl_add_u32 v127, v4, 10, v127      ; + r8*1024   (v4 = l/8)
    s_lshl_b32 s41, s36, 7
    v_add_u32 v127, s41, v127
    s_lshl_b32 s42, s3, 16                 ; w*8*8*1024 global
    s_lshl_b32 s43, s3, 13                 ; w*8*1024 lds
    v_bfe_u32 v40, v1, 2, 2                ; r
    v_lshl_add_u32 v122, v3, 3, v40
    v_lshlrev_b32 v122, 7, v122
    v_lshrrev_b32 v40, 1, v40
    v_xor_b32 v40, s39, v40
    v_lshl_add_u32 v122, v40, 6, v122
    v_bfe_u32 v40, v1, 4, 1
    v_lshl_add_u32 v122, v40, 5, v122
    v_and_b32 v40, 3, v1
    v_lshl_add_u32 v122, v40, 3, v122
    s_lshl_b32 s41, s40, 15
    v_add_u32 v122, s41, v122
    v_mov_b32 v104, 0x3f803f80
    v_mov_b32 v105, 0
    v_mov_b32 v106, 0
    """)
    for j in range(8):
        A(f"""s_add_u32 m0, s43, {j*1024}
        s_add_u32 s41, s42, {j*8192}
        buffer_load_dwordx4 v127, s[20:23], s41 offen lds""")
    A("s_waitcnt vmcnt(8)")
    epoch_async(A, N)
    A.stamp(1)
    def wdma(j): return [f"s_add_u32 m0, s43, {j*1024}", f"s_add_u32 s41, s42, {j*8192}", "buffer_load_dwordx4 v127, s[20:23], s41 offen lds"]
    Amain = A
    A = Asm()
    for i in range(32):
        A(f"v_dot2c_f32_bf16 v{105 + (i%2)}, v{8+i}, v104")
    for i in range(32):
        A(f"v_lshlrev_b32 v{40+2*i}, 16, v{8+i}")
        A(f"v_and_b32 v{41+2*i}, 0xffff0000, v{8+i}")
    A("v_add_f32 v105, v105, v106")
    dpp_sum8(A, 105)
    A(f"""
    v_mul_f32 v107, 0x3b000000, v105       ; mean
    v_cvt_pk_bf16_f32 v108, v107, v107
    v_lshlrev_b32 v108, 16, v108           ; m_b
    v_sub_f32 v110, 0, v108
    v_sub_f32 v107, v107, v108             ; delta
    v_mov_b32 v112, 0
    v_mov_b32 v113, 0
    """)
    for i in range(32):
        A(f"v_pk_add_f32 {v(40+2*i,2)}, {v(40+2*i,2)}, v[110:111] op_sel_hi:[1,0]")
    for i in range(32):
        A(f"v_pk_fma_f32 v[112:113], {v(40+2*i,2)}, {v(40+2*i,2)}, v[112:113]")
    A("v_add_f32 v112, v112, v113")
    dpp_sum8(A, 112)
    A(f"""
    v_mul_f32 v112, 0x3b000000, v112
    v_fma_f32 v112, -v107, v107, v112
    v_max_f32 v112, 0, v112
    v_cvt_pk_bf16_f32 v112, v112, v112
    v_lshlrev_b32 v112, 16, v112
    v_add_f32 v112, 0x3727c5ac, v112
    v_cvt_pk_bf16_f32 v112, v112, v112
    v_lshlrev_b32 v112, 16, v112
    v_sqrt_f32 v112, v112
    s_nop 0
    v_cvt_pk_bf16_f32 v112, v112, v112
    v_lshlrev_b32 v112, 16, v112
    v_rcp_f32 v110, v112
    """)
    for i in range(32):
        A(f"v_cvt_pk_bf16_f32 v{8+i}, v{40+2*i}, v{41+2*i}")
    for i in range(32):
        A(f"v_lshlrev_b32 v{40+2*i}, 16, v{8+i}")
        A(f"v_and_b32 v{41+2*i}, 0xffff0000, v{8+i}")
    for i in range(32):
        A(f"v_pk_mul_f32 {v(40+2*i,2)}, {v(40+2*i,2)}, v[110:111] op_sel_hi:[1,0]")
    for i in range(32):
        A(f"v_cvt_pk_bf16_f32 v{8+i}, v{40+2*i}, v{41+2*i}")
    ln = A.lines
    A = Amain
    interleave(A, ln, [], start=0, every=12)
    A.stamp(2)
    A(f"""
    s_waitcnt vmcnt(0)
    s_barrier
    """)
    for st in range(16):
        A(f"ds_read_b64_tr_b16 {v(40+4*st,2)}, v122 offset:{st*2048}")
        A(f"ds_read_b64_tr_b16 {v(42+4*st,2)}, v122 offset:{st*2048+512}")
    A(f"""
    s_and_b32 s41, s3, 3
    s_lshl_b32 s41, s41, 3
    v_add_u32 v4, s41, v4                  ; m
    v_xor_b32 v4, v4, v5
    v_lshlrev_b32 v4, 4, v4
    v_lshrrev_b32 v7, 1, v5
    v_lshl_add_u32 v4, v7, 10, v4
    v_and_b32 v7, 1, v5
    v_lshl_add_u32 v4, v7, 9, v4
    s_lshl_b32 s41, s40, 15                ; (w/4)*32768
    v_add_u32 v4, s41, v4
    v_xor_b32 v7, v2, v3
    v_lshlrev_b32 v7, 4, v7
    v_lshl_add_u32 v7, v3, 9, v7
    s_lshl_b32 s41, s38, 15
    s_lshl_b32 s42, s40, 14
    s_add_u32 s41, s41, s42
    v_add_u32 v120, s41, v7
    v_xor_b32 v121, 32, v120
    v_xor_b32 v122, 64, v120
    v_xor_b32 v123, 96, v120
    s_waitcnt lgkmcnt(0)
    s_barrier
    """)
    for j in range(8):
        A(f"ds_write_b128 v4, {v(8+4*j,4)} offset:{j*4096}")
    A("s_waitcnt lgkmcnt(0)")
    A("s_barrier")
    A.stamp(3)
    QD = 104
    A.label(f"{N}_qproj")
    def brd(st): A(f"ds_read_b128 {v(8+4*(st%4),4)}, v{120 + st%4} offset:{st*1024}")
    brd(0); brd(1); brd(2)
    for st in range(16):
        if st + 3 < 16:
            brd(st+3); A("s_waitcnt lgkmcnt(3)")
        else:
            A(f"s_waitcnt lgkmcnt({15-st})")
        c_ = "0" if st == 0 else v(QD,16)
        A(f"v_mfma_f32_32x32x16_bf16 {v(QD,16)}, {v(40+4*st,4)}, {v(8+4*(st%4),4)}, {c_}")
    A(f"""
    s_barrier
    s_nop 7
    """)
    A(f"""
    s_lshl_b32 s41, s3, 11
    s_add_u32 s41, s41, 65536
    v_add_u32 v7, s41, v6
    s_xor_b32 s41, s41, 8192
    v_add_u32 v4, s41, v6
    s_cmp_eq_u32 s40, 0
    s_cbranch_scc1 {N}_nosw
    """)
    for i in range(8): A(f"v_swap_b32 v{QD+i}, v{QD+8+i}")
    A.label(f"{N}_nosw")
    A(f"""
    ds_write_b128 v7, {v(QD+8,4)}
    ds_write_b128 v7, {v(QD+12,4)} offset:1024
    v_mov_b32 v5, v4
    s_and_b32 s49, s2, 7
    s_lshl_b32 s49, s49, 10
    s_add_u32 s49, s49, {FLG_KVR}
    s_waitcnt lgkmcnt(0)
    """)
    A.stamp(4)
    srd_off(A, 24, 12, 13, WS_KV, (128 << 10) + 256)
    poll_kv(A, N, "s49", have_async=True)
    A.stamp(5)
    def chunk_load(lds_s, glob_s):
        for j in range(2):
            A(f"""s_add_u32 m0, {lds_s[0]}, {lds_s[1] + j*1024}
            s_add_u32 s41, {glob_s[0]}, {glob_s[1] + j*1024}
            buffer_load_dwordx4 v6, s[24:27], s41 offen lds""")
    A(f"""
    s_lshl_b32 s39, s39, 1
    s_add_u32 s39, s39, s40
    s_lshl_b32 s40, s3, 11
    """)
    chunk_load(("s40", 0), ("s40", 0))
    A(f"""
    v_lshlrev_b32 v7, 2, v1
    s_mov_b32 s41, {128<<10}
    buffer_load_dword v8, v7, s[24:27], s41 offen
    """)
    for cch in range(1, 4): chunk_load(("s40", cch*SLOT), ("s40", cch*SLOT))
    A(f"""
    ds_read_b128 {v(40,4)}, v5
    ds_read_b128 {v(44,4)}, v5 offset:1024
    s_waitcnt lgkmcnt(0)
    """)
    for i in range(8): A(f"v_add_f32 v{QD+i}, v{QD+i}, v{40+i}")
    cq = 0.25 * math.log2(math.e)
    A(f"s_mov_b32 s41, {f2u(cq)}")
    for i in range(8): A(f"v_mul_f32 v{QD+i}, s41, v{QD+i}")
    for i in range(4): A(f"v_cvt_pk_bf16_f32 v{Q+i}, v{QD+2*i}, v{QD+2*i+1}")
    srd_off(A, 28, 12, 13, WS_AT, AT_BYTES)
    A(f"""
    s_mov_b32 s60, 0x0000ffff
    s_mov_b32 s61, 0x0000ffff
    v_mov_b32 v{vKl}, v6
    v_and_b32 v11, 15, v1
    v_lshlrev_b32 v11, 4, v11
    v_lshl_add_u32 v{vVl}, v3, 8, v11
    v_mov_b32 v15, 0x3f803f80
    v_cmp_eq_u32 vcc, 16, v2
    s_mov_b32 s50, 0                       ; cur slot offset (chunk c -> slot c%5)
    s_mov_b32 s51, {SLOT}
    s_mov_b32 s52, 0
    v_mov_b32 v13, 0
    """)
    for i in range(16): A(f"v_cndmask_b32 v{Vf+i}, 0, v15, vcc")
    for i in range(4): A(f"v_dot2c_f32_bf16 v13, v{Q+i}, v{Q+i}")
    for i in range(16): A(f"v_mov_b32 v{O+i}, 0")
    for i in range(8): A(f"v_mov_b32 v{P+i}, 0")
    A(f"""
    v_add_u32 v{vKc}, s50, v{vKl}
    v_add_u32 v{vVc}, s50, v{vVl}
    v_add_u32 v{vKn}, s51, v{vKl}
    v_add_u32 v{vVn}, s51, v{vVl}
    v_mov_b32 v15, v13
    s_nop 1
    v_permlane32_swap_b32 v13, v15
    v_add_f32 v13, v13, v15
    s_waitcnt vmcnt(6)
    s_barrier
    """)
    chunk_load(("s40", 4*SLOT), ("s40", 4*SLOT))
    A(f"""
    ds_read_b128 {v(Kf,4)}, v{vKc} offset:0
    ds_read_b128 {v(Kf+4,4)}, v{vKc} offset:2048
    s_mov_b64 exec, s[60:61]
    ds_read_b128 {v(Vf,4)}, v{vVc} offset:1024
    ds_read_b128 {v(Vf+4,4)}, v{vVc} offset:1536
    s_mov_b64 exec, -1
    """)
    lane_reduce_max(A, 8, 44, 62)
    A(f"""
    s_nop 1
    v_mul_f32 v13, s62, v13
    v_sqrt_f32 v13, v13
    s_nop 0
    v_mul_f32 v13, 0x3f828f5c, v13
    v_cmp_lt_f32 vcc, 0x42200000, v13
    s_cmp_lg_u64 vcc, 0
    s_cbranch_scc0 {N}_fast
    v_mov_b32 v13, 0xff800000
    s_mov_b32 s41, 0
    """)
    A.label(f"{N}_slow")
    A(f"""
    buffer_load_dwordx4 {v(P,4)}, v6, s[24:27], s41 offen
    s_waitcnt vmcnt(0)
    v_mfma_f32_32x32x16_bf16 {v(S0,16)}, {v(P,4)}, {v(Q,4)}, 0
    s_nop 15
    s_nop 7
    """)
    for i in range(8): A(f"v_max3_f32 v13, v{S0+2*i}, v{S0+2*i+1}, v13")
    A(f"""
    s_add_u32 s41, s41, 2048
    s_cmp_lt_u32 s41, {128<<10}
    s_cbranch_scc1 {N}_slow
    v_mov_b32 v15, v13
    s_nop 1
    v_permlane32_swap_b32 v13, v15
    v_max_f32 v13, v13, v15
    """)
    for i in range(4): A(f"v_mov_b32 v{P+i}, 0")
    A.label(f"{N}_fast")
    for i in range(16): A(f"v_sub_f32 v{C+i}, 0, v13")
    A(f"""
    s_waitcnt lgkmcnt(0)
    s_nop 1
    v_mfma_f32_32x32x16_bf16 {v(S0,16)}, {v(Kf,4)}, {v(Q,4)}, {v(C,16)}
    s_nop 15
    """)
    def chunk_issue():
        lab = A.newlabel(f"{N}_noissue")
        A(f"""
        s_add_u32 s53, s52, -1
        s_cmp_gt_u32 s53, 2
        s_cbranch_scc1 {lab}
        s_lshl_b32 s54, s53, 14
        s_add_u32 s54, s54, s40
        s_add_u32 s55, s52, 4
        s_lshl_b32 s55, s55, 14
        s_add_u32 s55, s55, s40
        """)
        chunk_load(("s54", 0), ("s55", 0))
        A.label(lab)
    A.chunk_issue = chunk_issue
    A.stamp(6)
    A.raw(".p2align 6")
    A.label(f"{N}_loop")
    for i in range(8): att_stage(A, i)
    A(f"""
    s_mov_b32 s50, s51
    s_add_u32 s51, s51, {SLOT}
    s_cmp_ge_u32 s51, {5*SLOT}
    s_cselect_b32 s51, 0, s51
    v_mov_b32 v{vKc}, v{vKn}
    v_mov_b32 v{vVc}, v{vVn}
    v_add_u32 v{vKn}, s51, v{vKl}
    v_add_u32 v{vVn}, s51, v{vVl}
    s_add_u32 s52, s52, 1
    s_cmp_lt_u32 s52, 8
    s_cbranch_scc1 {N}_loop
    """)
    A(f"v_mfma_f32_32x32x16_bf16 {v(O,16)}, {v(Vf+8+4,4)}, {v(P+4,4)}, {v(O,16)}")
    A(f"""
    s_lshl_b32 s41, s37, 1
    s_add_u32 s41, s41, s38
    s_mul_i32 s41, s41, {144*1024}
    s_lshl_b32 s42, s36, 12
    s_lshl_b32 s43, s39, 10
    s_add_u32 s41, s41, s42
    s_add_u32 s41, s41, s43
    s_nop 15
    v_mov_b32 v14, v{O+8}
    v_mov_b32 v15, v{O+8}
    s_nop 1
    v_permlane32_swap_b32 v15, v14
    v_rcp_f32 v15, v15
    s_nop 0
    """)
    for i in range(8): A(f"v_mul_f32 v{O+i}, v{O+i}, v15")
    for i in range(4): A(f"v_cvt_pk_bf16_f32 v{P+i}, v{O+2*i}, v{O+2*i+1}")
    A(f"buffer_store_dwordx4 {v(P,4)}, v6, s[28:31], s41 offen sc1")
    A(f"""s_lshl_b32 s49, s37, 7
    s_lshl_b32 s41, s36, 3
    s_add_u32 s49, s49, s41
    s_add_u32 s49, s49, {FLG_O}""")
    signal(A, N, "s49")
    A.stamp_flush(1, 12, 13, 3, 1, 8)
    A("s_endpgm")
    A.label(f"{N}_end")
    A("s_endpgm")
    return A.text(), kernel_desc(name, 128, 100)


def gen_kvx(A, N):
    A("s_setprio 3")
    A(f"""
    s_xor_b32 s46, s2, 256
    s_or_b32 s46, s46, s3
    s_cmp_lg_u32 s46, 0
    s_cbranch_scc1 {N}_noep
    s_memrealtime s[46:47]
    v_mov_b32 v40, 0
    s_waitcnt lgkmcnt(0)
    v_mov_b32 v42, s46
    v_mov_b32 v43, s47
    s_mov_b64 exec, 1
    global_store_dwordx2 v40, v[42:43], s[14:15] sc1
    s_mov_b64 exec, -1
    {N}_noep:
    s_sub_u32 s36, s2, 256
    s_lshr_b32 s36, s36, 6
    """)
    A(f"""
    s_cmp_eq_u32 s36, 1
    s_cselect_b32 s24, s10, s8
    s_cselect_b32 s25, s11, s9
    s_and_b32 s25, s25, 0xffff
    s_mov_b32 s26, {512*32}
    s_mov_b32 s27, 0x00020000
    s_lshl_b32 s43, s3, 11
    s_add_u32 m0, s43, 32768
    s_add_u32 s41, s43, 1024
    buffer_load_dwordx4 v6, s[24:27], s43 offen lds
    s_add_u32 m0, s43, {32768+1024}
    s_nop 0
    buffer_load_dwordx4 v6, s[24:27], s41 offen lds
    ; X write addr: piece j: s = 8j + c16/2, h' = c16%2, m' = (4w + r4) ^ (c16%8)
    s_lshl_b32 s41, s3, 2
    v_add_u32 v40, s41, v4
    v_and_b32 v41, 7, v5
    v_xor_b32 v40, v40, v41
    v_lshlrev_b32 v40, 4, v40
    v_lshrrev_b32 v41, 1, v5
    v_lshl_add_u32 v40, v41, 10, v40
    v_and_b32 v41, 1, v5
    v_lshl_add_u32 v60, v41, 9, v40
    v_xor_b32 v40, v2, v3
    v_lshlrev_b32 v40, 4, v40
    v_lshl_add_u32 v40, v3, 9, v40
    s_lshl_b32 s41, s3, 12
    v_add_u32 v61, s41, v40
    v_xor_b32 v62, 32, v61
    v_xor_b32 v63, 64, v61
    v_xor_b32 v64, 96, v61
    v_bfe_u32 v40, v1, 2, 2
    v_lshl_add_u32 v40, v3, 3, v40
    v_lshlrev_b32 v40, 5, v40
    v_and_b32 v41, 3, v1
    v_lshl_add_u32 v40, v41, 3, v40
    s_lshl_b32 s41, s3, 11
    s_add_u32 s41, s41, 32768
    v_add_u32 v65, s41, v40
    v_mov_b32 v56, 0x3f803f80
    v_mov_b32 v57, 0
    """)
    A("s_waitcnt vmcnt(2)")
    epoch_async(A, N)
    def sum16(r):
        for ctrl in ("quad_perm:[1,0,3,2]", "quad_perm:[2,3,0,1]", "row_half_mirror", "row_mirror"):
            A("s_nop 1")
            A(f"v_add_f32_dpp v{r}, v{r}, v{r} {ctrl} row_mask:0xf bank_mask:0xf")
    for i in range(16): A(f"v_dot2c_f32_bf16 v57, v{8+i}, v56")
    for i in range(16):
        A(f"v_lshlrev_b32 v{24+2*i}, 16, v{8+i}")
        A(f"v_and_b32 v{25+2*i}, 0xffff0000, v{8+i}")
    sum16(57)
    A(f"""
    v_mul_f32 v57, 0x3b000000, v57
    v_cvt_pk_bf16_f32 v58, v57, v57
    v_lshlrev_b32 v58, 16, v58
    v_sub_f32 v66, 0, v58
    v_sub_f32 v57, v57, v58
    v_mov_b32 v68, 0
    v_mov_b32 v69, 0
    """)
    for i in range(16): A(f"v_pk_add_f32 {v(24+2*i,2)}, {v(24+2*i,2)}, v[66:67] op_sel_hi:[1,0]")
    for i in range(16): A(f"v_pk_fma_f32 v[68:69], {v(24+2*i,2)}, {v(24+2*i,2)}, v[68:69]")
    A("v_add_f32 v68, v68, v69")
    sum16(68)
    A(f"""
    v_mul_f32 v68, 0x3b000000, v68
    v_fma_f32 v68, -v57, v57, v68
    v_max_f32 v68, 0, v68
    v_cvt_pk_bf16_f32 v68, v68, v68
    v_lshlrev_b32 v68, 16, v68
    v_add_f32 v68, 0x3727c5ac, v68
    v_cvt_pk_bf16_f32 v68, v68, v68
    v_lshlrev_b32 v68, 16, v68
    v_sqrt_f32 v68, v68
    s_nop 0
    v_cvt_pk_bf16_f32 v68, v68, v68
    v_lshlrev_b32 v68, 16, v68
    v_rcp_f32 v66, v68
    """)
    for i in range(16): A(f"v_cvt_pk_bf16_f32 v{8+i}, v{24+2*i}, v{25+2*i}")
    for i in range(16):
        A(f"v_lshlrev_b32 v{24+2*i}, 16, v{8+i}")
        A(f"v_and_b32 v{25+2*i}, 0xffff0000, v{8+i}")
    for i in range(16): A(f"v_pk_mul_f32 {v(24+2*i,2)}, {v(24+2*i,2)}, v[66:67] op_sel_hi:[1,0]")
    for i in range(16): A(f"v_cvt_pk_bf16_f32 v{8+i}, v{24+2*i}, v{25+2*i}")
    for j in range(4): A(f"ds_write_b128 v60, {v(8+4*j,4)} offset:{j*8192}")
    A("s_waitcnt vmcnt(0) lgkmcnt(0)")
    A("s_barrier")
    for st in range(4):
        A(f"ds_read_b128 {v(8+4*st,4)}, v{61+st} offset:{st*1024}")
    A(f"""
    s_cmp_lg_u32 s36, 2
    s_cbranch_scc1 {N}_kvp
    """)
    srd_off(A, 16, 12, 13, WS_XN, 2048 * 1024)
    A(f"""
    s_lshl_b32 s41, s37, 15
    s_lshl_b32 s42, s3, 12
    s_add_u32 s41, s41, s42
    s_waitcnt lgkmcnt(0)
    """)
    for st in range(4):
        A(f"buffer_store_dwordx4 {v(8+4*st,4)}, v6, s[16:19], s41 offen offset:{st*1024} sc1")
    A(f"s_branch {N}_xsig")
    A.label(f"{N}_kvp")
    for st in range(4):
        A(f"ds_read_b64_tr_b16 {v(24+4*st,2)}, v65 offset:{st*512}")
        A(f"ds_read_b64_tr_b16 {v(26+4*st,2)}, v65 offset:{st*512+128}")
    KD = 40
    srd_off(A, 24, 12, 13, WS_KV, (128 << 10) + 256)
    A(f"""
    s_lshl_b32 s41, s3, 11
    s_add_u32 s41, s41, 49152
    v_add_u32 v4, s41, v6
    v_lshlrev_b32 v5, 4, v2
    v_lshl_add_u32 v5, v3, 8, v5           ; (h*16+m)*16
    v_add_u32 v7, s41, v5
    v_cmp_gt_u32 vcc, 16, v2
    s_mov_b64 s[50:51], vcc
    s_cmp_eq_u32 s36, 1
    s_cbranch_scc1 {N}_xv
    """)
    for st in range(4):
        A(f"s_waitcnt lgkmcnt({2*(3-st)})")
        A(f"v_mfma_f32_32x32x16_bf16 {v(KD,16)}, {v(24+4*st,4)}, {v(8+4*st,4)}, {'0' if st == 0 else v(KD,16)}")
    A(f"""
    s_nop 15
    ds_write_b128 v4, {v(KD,4)}
    ds_write_b128 v4, {v(KD+4,4)} offset:1024
    s_waitcnt lgkmcnt(0)
    s_barrier
    s_cmp_lg_u32 s3, 0
    s_cbranch_scc1 {N}_xsig
    """)
    for ww in range(8):
        A(f"ds_read_b128 {v(8+8*ww,4)}, v4 offset:{ww*2048}")
        A(f"ds_read_b128 {v(12+8*ww,4)}, v4 offset:{ww*2048+1024}")
    A("s_waitcnt lgkmcnt(0)")
    for i in range(0, 8, 2):
        for a_, b_ in ((8, 16), (24, 32), (40, 48), (56, 64)): A(f"v_pk_add_f32 {v(a_+i,2)}, {v(a_+i,2)}, {v(b_+i,2)}")
    for i in range(0, 8, 2):
        A(f"v_pk_add_f32 {v(8+i,2)}, {v(8+i,2)}, {v(24+i,2)}")
        A(f"v_pk_add_f32 {v(40+i,2)}, {v(40+i,2)}, {v(56+i,2)}")
    for i in range(0, 8, 2): A(f"v_pk_add_f32 {v(8+i,2)}, {v(8+i,2)}, {v(40+i,2)}")
    for i in range(4): A(f"v_cvt_pk_bf16_f32 v{16+i}, v{8+2*i}, v{9+2*i}")
    A(f"""
    s_lshl_b32 s42, s37, 11
    buffer_store_dwordx4 v[16:19], v6, s[24:27], s42 offen sc1
    v_mul_f32 v20, v8, v8
    """)
    for i in range(1, 8): A(f"v_fmac_f32 v20, v{8+i}, v{8+i}")
    A(f"""
    v_mov_b32 v21, v20
    s_nop 1
    v_permlane32_swap_b32 v20, v21
    v_add_f32 v20, v20, v21
    """)
    lane_reduce_max(A, 20, 44, 43)
    A(f"""
    s_lshl_b32 s44, s37, 2
    s_add_u32 s44, s44, {128<<10}
    v_mov_b32 v21, s43
    v_mov_b32 v22, 0
    s_mov_b64 exec, 1
    buffer_store_dword v21, v22, s[24:27], s44 offen sc1
    s_mov_b64 exec, -1
    s_branch {N}_xsig
    """)
    A.label(f"{N}_xv")
    for st in range(4):
        A(f"s_waitcnt lgkmcnt({2*(3-st)})")
        A(f"v_mfma_f32_32x32x16_bf16 {v(KD,16)}, {v(8+4*st,4)}, {v(24+4*st,4)}, {'0' if st == 0 else v(KD,16)}")
    A("s_nop 7")
    A("s_nop 7")
    A("s_mov_b64 exec, s[50:51]")
    for qd in range(4): A(f"ds_write_b128 v7, {v(KD+4*qd,4)} offset:{qd*512}")
    A(f"""
    s_mov_b64 exec, -1
    s_waitcnt lgkmcnt(0)
    s_barrier
    s_cmp_gt_u32 s3, 1
    s_cbranch_scc1 {N}_xsig
    s_lshl_b32 s41, s3, 10                 ; j*1024
    s_add_u32 s41, s41, 49152
    v_add_u32 v7, s41, v5
    s_mov_b64 exec, s[50:51]
    """)
    for ww in range(8):
        A(f"ds_read_b128 {v(8+8*ww,4)}, v7 offset:{ww*2048}")
        A(f"ds_read_b128 {v(12+8*ww,4)}, v7 offset:{ww*2048+512}")
    A("s_waitcnt lgkmcnt(0)")
    for i in range(0, 8, 2):
        for a_, b_ in ((8, 16), (24, 32), (40, 48), (56, 64)): A(f"v_pk_add_f32 {v(a_+i,2)}, {v(a_+i,2)}, {v(b_+i,2)}")
    for i in range(0, 8, 2):
        A(f"v_pk_add_f32 {v(8+i,2)}, {v(8+i,2)}, {v(24+i,2)}")
        A(f"v_pk_add_f32 {v(40+i,2)}, {v(40+i,2)}, {v(56+i,2)}")
    for i in range(0, 8, 2): A(f"v_pk_add_f32 {v(8+i,2)}, {v(8+i,2)}, {v(40+i,2)}")
    for i in range(4): A(f"v_cvt_pk_bf16_f32 v{16+i}, v{8+2*i}, v{9+2*i}")
    A(f"""
    s_lshl_b32 s41, s37, 11
    s_lshl_b32 s42, s3, 9
    s_add_u32 s41, s41, s42
    s_add_u32 s41, s41, 1024
    buffer_store_dwordx4 v[16:19], v5, s[24:27], s41 offen sc1
    s_mov_b64 exec, -1
    """)
    A.label(f"{N}_xsig")
    done = A.newlabel("xsig")
    A(f"""
    s_waitcnt vmcnt(0)
    s_barrier
    s_cmp_lg_u32 s3, 0
    s_cbranch_scc1 {done}
    """)
    epoch_use(A, N)
    A(f"""
    s_lshl_b32 s41, s37, 4
    s_lshl_b32 s42, s36, 3
    s_add_u32 s41, s41, s42
    s_add_u32 s41, s41, {FLG_KVR}
    s_lshr_b32 s42, s37, 2
    s_lshl_b32 s42, s42, 7
    s_and_b32 s43, s37, 3
    s_lshl_b32 s43, s43, 3
    s_add_u32 s42, s42, s43
    s_add_u32 s42, s42, {FLG_XN}
    s_cmp_eq_u32 s36, 2
    s_cselect_b32 s41, s42, s41
    s_cselect_b32 s42, 1, 0xff
    v_lshlrev_b32 v5, 10, v1
    v_add_u32 v5, s41, v5
    v_mov_b32 v124, s{EP}
    v_mov_b32 v125, s{EP+1}
    s_mov_b32 exec_lo, s42
    s_mov_b32 exec_hi, 0
    global_store_dwordx2 v5, v[124:125], s[12:13] sc1
    s_mov_b64 exec, -1
    """)
    A.label(done)

ACC, AF, BF, DBF, XR_, TD, TB_ = 16, 80, 96, 96, 120, 124, 126
DR = 3
def gen_g(A, name, prio, lowprio):
    V = VM(A)
    A(f"""
    s_setprio {lowprio}
    s_sub_u32 s2, s2, 256
    s_load_dwordx4 s[4:7], s[0:1], 48
    s_load_dwordx4 s[8:11], s[0:1], 64
    s_load_dwordx2 s[56:57], s[0:1], 0     ; x
    s_load_dwordx2 s[58:59], s[0:1], 32    ; wo
    v_lshlrev_b32 v{TB_}, 7, v1            ; lane*128
    s_and_b32 s61, s2, 31
    s_lshr_b32 s60, s2, 5                  ; nb
    s_waitcnt lgkmcnt(0)
    """)
    srd_off(A, 28, 12, 13, WS_AT, AT_BYTES)
    srd(A, 64, 8, 9, 1792 * 1024)
    srd(A, 32, 58, 59, 512 * 1024)
    A(f"""
    s_cmp_ge_u32 s2, 224
    s_cbranch_scc1 {name}_down
    s_mov_b32 s53, s2
    """)
    A(f"""
    s_and_b32 s36, s53, 7
    s_lshr_b32 s37, s53, 3
    s_and_b32 s38, s36, 3
    s_lshl_b32 s38, s38, 2
    s_and_b32 s39, s37, 3
    s_add_u32 s38, s38, s39                ; mb
    s_lshr_b32 s39, s36, 2
    s_mul_i32 s39, s39, 7
    s_lshr_b32 s37, s37, 2
    s_add_u32 s39, s39, s37                ; fb
    s_and_b32 s36, s3, 1                   ; wm
    s_lshr_b32 s37, s3, 1                  ; wf 0..3
    """)
    srd(A, 16, 4, 5, 512 * 3584)
    srd(A, 20, 6, 7, 512 * 3584)
    srd_off(A, 24, 12, 13, WS_XN, 2048 * 1024)
    A(f"""
    v_lshrrev_b32 v7, 4, v1
    v_bfe_u32 v8, v1, 2, 2
    v_xor_b32 v8, v8, v7
    s_mov_b32 s40, 3584
    v_mul_lo_u32 v7, v7, s40
    v_lshl_add_u32 v7, v8, 6, v7
    v_and_b32 v8, 3, v1
    v_lshl_add_u32 v7, v8, 4, v7
    s_lshl_b32 s41, s38, 2
    s_add_u32 s41, s41, s37
    s_lshl_b32 s41, s41, 15
    s_lshl_b32 s42, s36, 10
    s_add_u32 s41, s41, s42
    s_mul_i32 s42, s3, {4*3584}
    s_lshl_b32 s43, s39, 8
    s_add_u32 s42, s42, s43
    s_lshl_b32 s44, s3, 10
    """)
    def gX(slot, st): return ([f"s_add_u32 m0, s44, {slot}"], "buffer_load_dwordx4 v6, s[24:27], s41 offen lds", ("S", st), ["s_add_u32 s41, s41, 2048"])
    def gW(slot, st): return [
          ([f"s_add_u32 m0, s44, {slot + 8192}"], "buffer_load_dwordx4 v7, s[16:19], s42 offen lds", ("S", st), []),
          ([f"s_add_u32 m0, s44, {slot + 16384}"], "buffer_load_dwordx4 v7, s[20:23], s42 offen lds", ("S", st), [f"s_add_u32 s42, s42, {32*3584}"])]
    def emit4(g):
        for x in g[0]: A(x)
        if len(g[0]) == 1: A("s_nop 0")
        V.op(g[1], g[2])
        for x in g[3]: A(x)
    for sl in range(3):
        for g in gW(sl*STG, sl): emit4(g)
    A(f"""
    v_bfe_u32 v8, v1, 2, 2
    v_lshl_add_u32 v9, v3, 3, v8
    v_lshlrev_b32 v9, 8, v9
    v_bfe_u32 v10, v1, 4, 1
    v_lshl_add_u32 v9, v10, 5, v9
    v_and_b32 v10, 3, v1
    v_lshl_add_u32 v9, v10, 3, v9
    v_add_u32 v9, 8192, v9
    v_xor_b32 v10, s37, v8
    v_lshl_add_u32 v10, v10, 6, v9         ; A addr
    s_lshl_b32 s46, s36, 12
    v_add_u32 v12, s46, v6                 ; B addr
    s_lshl_b32 s49, s38, 7
    s_add_u32 s49, s49, {FLG_XN}
    """)
    poll(A, name, "s49", 4, need_epoch=True)
    for sl in range(3): emit4(gX(sl*STG, sl))
    def acc(gu, mt): return ACC + 16*(gu*2 + mt)
    def reads(ks, slot):
        L = []
        for mt in range(2):
            L.append(f"ds_read_b128 {v(BF+8*ks+4*mt,4)}, v12 offset:{slot*STG + mt*2048 + ks*1024}")
        for gu in range(2):
            fr = AF + 8*ks + 4*gu
            off = slot*STG + gu*8192 + ks*4096
            L.append(f"ds_read_b64_tr_b16 {v(fr,2)}, v10 offset:{off}")
            L.append(f"ds_read_b64_tr_b16 {v(fr+2,2)}, v10 offset:{off+1024}")
        return L
    def mf(ks, first):
        return [f"v_mfma_f32_32x32x16_bf16 {v(acc(gu,mt),16)}, {v(AF+8*ks+4*gu,4)}, {v(BF+8*ks+4*mt,4)}, {'0' if first else v(acc(gu,mt),16)}"
                for gu in range(2) for mt in range(2)]
    V.wait([("S", 0)])
    A("s_barrier")
    for x in reads(0, 0): A(x)
    A.stamp(1)
    for st in range(16):
        slot = st % 3
        A("s_waitcnt lgkmcnt(0)")
        R1 = reads(1, slot); m0 = mf(0, st == 0)
        ri = 0
        for i in range(4):
            A(m0[i])
            for _ in range(2 if i < 2 else 1):
                if ri < len(R1): A(R1[ri]); ri += 1
        if st < 15:
            V.wait([("S", st+1)], " lgkmcnt(0)")
            A("s_barrier")
        else:
            A("s_waitcnt lgkmcnt(0)")
        G = ([gX(slot*STG, st+3)] + gW(slot*STG, st+3)) if st + 3 < 16 else []
        m1 = mf(1, False); R0 = reads(0, (st+1) % 3) if st < 15 else []
        ri = 0
        for i in range(4):
            A(m1[i])
            for _ in range(2 if i < 2 else 1):
                if ri < len(R0): A(R0[ri]); ri += 1
            if i < len(G): emit4(G[i])
    A(f"s_setprio {prio}")
    A.nop(16)
    A.stamp(2)
    c0 = -2.0 * math.log2(math.e) * math.sqrt(2.0 / math.pi)
    c1 = c0 * 0.044715
    A(f"""
    s_lshl_b32 s48, s38, 2
    s_lshl_b32 s49, s36, 1
    s_add_u32 s48, s48, s49
    s_mul_i32 s48, s48, {144*1024}
    s_lshl_b32 s49, s39, 3
    s_lshl_b32 s53, s37, 1
    s_add_u32 s49, s49, s53
    s_add_u32 s49, s49, 32
    s_lshl_b32 s49, s49, 10
    s_add_u32 s48, s48, s49
    v_mov_b32 v12, {f2u(c0)}
    v_mov_b32 v14, {f2u(c1)}
    v_mov_b32 v10, 1.0
    """)
    T = AF
    for mt in range(2):
        G_, U = acc(0, mt), acc(1, mt)
        for i0 in range(0, 16, 8):
            R = range(0, 8, 2)
            for i in R: A(f"v_pk_mul_f32 {v(T+i,2)}, {v(G_+i0+i,2)}, {v(G_+i0+i,2)}")
            for i in R: A(f"v_pk_fma_f32 {v(T+i,2)}, {v(T+i,2)}, v[14:15], v[12:13] op_sel_hi:[1,0,0]")
            for i in R: A(f"v_pk_mul_f32 {v(T+i,2)}, {v(T+i,2)}, {v(G_+i0+i,2)}")
            for i in range(8): A(f"v_exp_f32 v{T+i}, v{T+i}")
            for i in R: A(f"v_pk_mul_f32 {v(G_+i0+i,2)}, {v(G_+i0+i,2)}, {v(U+i0+i,2)}")
            for i in R: A(f"v_pk_add_f32 {v(T+i,2)}, {v(T+i,2)}, v[10:11] op_sel_hi:[1,0]")
            for i in range(8): A(f"v_rcp_f32 v{T+i}, v{T+i}")
            A("s_nop 0")
            for i in R: A(f"v_pk_mul_f32 {v(G_+i0+i,2)}, {v(G_+i0+i,2)}, {v(T+i,2)}")
        for i in range(8):
            A(f"v_cvt_pk_bf16_f32 v{U+i}, v{G_+2*i}, v{G_+2*i+1}")
    A(f"s_setprio {lowprio}")
    for mt in range(2):
        U = acc(1, mt)
        A(f"s_add_u32 s49, s48, {mt*144*1024}")
        A(f"buffer_store_dwordx4 {v(U,4)}, v6, s[28:31], s49 offen sc1")
        A(f"buffer_store_dwordx4 {v(U+4,4)}, v6, s[28:31], s49 offen offset:1024 sc1")
    A(f"""s_lshl_b32 s49, s38, 7
    s_lshl_b32 s53, s39, 3
    s_add_u32 s49, s49, s53
    s_add_u32 s49, s49, {FLG_H}""")
    signal(A, name, "s49")
    A.stamp(3)
    A(f"s_branch {name}_down2")
    A.label(f"{name}_down")
    A.label(f"{name}_down2")
    V.reset()
    A(f"""
    s_mov_b32 s37, s61
    s_mov_b32 s36, s60
    """)
    srd(A, 16, 56, 57, 2048 * 1024)
    srd(A, 20, 10, 11, 2048 * 1024)
    A(f"""
    v_lshrrev_b32 v9, 3, v1
    v_bfe_u32 v10, v1, 2, 1
    v_bfe_u32 v11, v1, 4, 1
    v_xor_b32 v10, v10, v11
    v_lshlrev_b32 v9, 10, v9
    v_lshl_add_u32 v9, v10, 6, v9
    v_and_b32 v10, 3, v1
    v_lshl_add_u32 v9, v10, 4, v9
    s_lshl_b32 s40, s36, 7
    v_add_u32 v9, s40, v9
    s_mul_i32 s41, s3, {224*1024}
    s_mul_i32 s42, s3, {14*1024}
    s_add_u32 s42, s42, {32*1024}
    s_lshl_b32 s43, s37, 1
    s_mul_i32 s43, s43, {144*1024}
    s_add_u32 s42, s42, s43
    s_mul_i32 s44, s3, {4*2048}
    v_bfe_u32 v10, v1, 2, 2
    v_lshl_add_u32 v11, v3, 2, v10
    v_lshlrev_b32 v11, 7, v11
    v_bfe_u32 v12, v1, 4, 1
    v_lshl_add_u32 v11, v12, 5, v11
    v_and_b32 v12, 3, v1
    v_lshl_add_u32 v11, v12, 3, v11
    v_add_u32 v11, s44, v11
    v_lshrrev_b32 v10, 1, v10
    v_lshl_add_u32 v12, v10, 6, v11
    v_xor_b32 v10, 1, v10
    v_lshl_add_u32 v13, v10, 6, v11
    """)
    WR = 4
    def issueW(k, srdW, tag):
        slot = k % WR
        return [([f"s_add_u32 m0, s44, {slot*2048 + j*1024}", f"s_add_u32 s46, s41, {j*8192}"], f"buffer_load_dwordx4 v9, s[{srdW}:{srdW+3}], s46 offen lds", tag, ["s_add_u32 s41, s41, 16384"] if j == 1 else []) for j in range(2)]
    def issueB(k, tag):
        slot = k % DR
        return [([f"s_add_u32 s46, s42, {mt*144*1024}", "s_nop 0"], f"buffer_load_dwordx4 {v(DBF+8*slot+4*mt,4)}, v6, s[28:31], s46 offen", tag, ["s_add_u32 s42, s42, 1024"] if mt == 1 else []) for mt in range(2)]
    def wreads(k):
        slot = k % WR; ab = AF + 8*(k % 2); L = []
        for nt in range(2):
            fr = ab + 4*nt; off = slot*2048
            L.append(f"ds_read_b64_tr_b16 {v(fr,2)}, v{12+nt} offset:{off}")
            L.append(f"ds_read_b64_tr_b16 {v(fr+2,2)}, v{12+nt} offset:{off+1024}")
        return L
    def dmf(k, first):
        ab = AF + 8*(k % 2); L = []
        for nt in range(2):
            for mt in range(2):
                D = ACC + 16*(nt*2+mt)
                L.append(f"v_mfma_f32_32x32x16_bf16 {v(D,16)}, {v(ab+4*nt,4)}, {v(DBF+8*(k % DR)+4*mt,4)}, {'0' if first else v(D,16)}")
        return L
    NH = 14
    for k in range(3):
        for g in issueW(k, 64, ("W", k)): emit4(g)
    A(f"""
    s_lshr_b32 s47, s3, 1
    s_and_b32 s48, s47, 1
    s_lshr_b32 s47, s47, 1
    s_and_b32 s50, s3, 1
    s_lshl_b32 s49, s37, 6
    s_lshl_b32 s53, s48, 5
    s_add_u32 s49, s49, s53
    s_lshl_b32 s49, s49, 10
    s_lshl_b32 s53, s36, 7
    s_add_u32 s49, s49, s53
    s_lshl_b32 s53, s47, 6
    s_add_u32 s49, s49, s53
    s_lshl_b32 s53, s50, 5
    s_add_u32 s49, s49, s53
    v_lshlrev_b32 v14, 10, v2
    v_add_u32 v14, s49, v14
    v_lshl_add_u32 v15, v3, 3, v14
    """)
    for j in range(2):
        V.op(f"buffer_load_dwordx2 {v(XR_+2*j,2)}, v15, s[16:19], 0 offen offset:{16*j}", "x")
    A(f"""
    s_lshr_b32 s53, s37, 3                 ; quarter
    s_mul_i32 s54, s3, 224
    s_mul_i32 s55, s53, 56
    s_add_u32 s54, s54, s55
    s_lshl_b32 s54, s54, 10
    s_add_u32 s54, s54, s40                ; + nb*128
    v_lshlrev_b32 v{TB_}, 10, v1
    s_mov_b32 exec_hi, 0x00ffffff
    """)
    V.op(f"buffer_load_dword v{TD}, v{TB_}, s[64:67], s54 offen", "T")
    A(f"""
    s_lshl_b32 s54, s3, 6
    s_lshl_b32 s55, s53, 4
    s_add_u32 s54, s54, s55
    s_lshl_b32 s54, s54, 10
    s_add_u32 s54, s54, s40
    s_mov_b32 exec_lo, 0xffff
    s_mov_b32 exec_hi, 0
    """)
    V.op(f"buffer_load_dword v{TD}, v{TB_}, s[32:35], s54 offen", "T")
    A("s_mov_b64 exec, -1")
    A(f"""s_lshr_b32 s49, s37, 1
    s_lshl_b32 s49, s49, 7
    s_add_u32 s49, s49, {FLG_H}""")
    poll(A, name, "s49", 14, need_epoch=True)
    A.stamp(4)
    for k in range(2):
        for g in issueB(k, ("B", k)): emit4(g)
    V.wait([("W", 0)])
    for x in wreads(0): A(x)
    for k in range(NH):
        items = [("B", k)] + ([("W", k+1)] if k + 1 < NH else [])
        V.wait(items, " lgkmcnt(0)")
        Rn = wreads(k+1) if k + 1 < NH else []
        Gi = (issueB(k+2, ("B", k+2)) if k + 2 < NH else []) + (issueW(k+3, 64, ("W", k+3)) if k + 3 < NH else [])
        M = dmf(k, k == 0)
        for i in range(4):
            A(M[i])
            if i < len(Rn): A(Rn[i])
            if i < len(Gi): emit4(Gi[i])
    A.stamp(5)
    A.nop(16)
    A("s_waitcnt lgkmcnt(0)")
    A("s_barrier")
    l1 = A.newlabel(name + "_r1"); l2 = A.newlabel(name + "_r2")
    A(f"""
    s_and_b32 s50, s3, 3
    s_lshl_b32 s50, s50, 14
    v_add_u32 v7, s50, v6
    s_cmp_lt_u32 s3, 4
    s_cbranch_scc1 {l1}
    """)
    for t in range(4):
        for qd in range(4):
            A(f"ds_write_b128 v7, {v(ACC+16*t+4*qd,4)} offset:{t*4096+qd*1024}")
    A.label(l1)
    A(f"""s_waitcnt lgkmcnt(0)
    s_barrier
    s_cmp_ge_u32 s3, 4
    s_cbranch_scc1 {l2}
    """)
    for half in range(2):
        for t in range(2):
            for qd in range(4):
                A(f"ds_read_b128 {v(80+16*t+4*qd,4)}, v7 offset:{(2*half+t)*4096+qd*1024}")
        A("s_waitcnt lgkmcnt(0)")
        for i in range(0, 32, 2):
            A(f"v_pk_add_f32 {v(ACC+32*half+i,2)}, {v(ACC+32*half+i,2)}, {v(80+i,2)}")
    for t in range(4):
        for qd in range(4):
            A(f"ds_write_b128 v7, {v(ACC+16*t+4*qd,4)} offset:{t*4096+qd*1024}")
    A.label(l2)
    A(f"""s_waitcnt lgkmcnt(0)
    s_barrier
    s_lshr_b32 s50, s3, 1
    s_lshl_b32 s50, s50, 12
    s_and_b32 s53, s3, 1
    s_lshl_b32 s53, s53, 11
    s_add_u32 s50, s50, s53
    v_add_u32 v7, s50, v6
    """)
    for ww in range(4):
        for qd in range(2):
            A(f"ds_read_b128 {v(ACC+8*ww+4*qd,4)}, v7 offset:{ww*16384+qd*1024}")
    for j in range(2):
        A(f"v_lshlrev_b32 v{80+4*j}, 16, v{XR_+2*j}")
        A(f"v_and_b32 v{81+4*j}, 0xffff0000, v{XR_+2*j}")
        A(f"v_lshlrev_b32 v{82+4*j}, 16, v{XR_+1+2*j}")
        A(f"v_and_b32 v{83+4*j}, 0xffff0000, v{XR_+1+2*j}")
    A("s_waitcnt lgkmcnt(0)")
    A("s_barrier")
    A(f"""
    s_lshl_b32 s41, s3, 16
    s_lshl_b32 s44, s3, 13
    """)
    for j in range(8):
        A(f"""s_add_u32 m0, s44, {j*1024}
        s_add_u32 s46, s41, {j*8192}
        buffer_load_dwordx4 v9, s[32:35], s46 offen lds""")
    for i in range(0, 8, 2):
        A(f"v_pk_add_f32 {v(ACC+i,2)}, {v(ACC+i,2)}, {v(ACC+8+i,2)}")
        A(f"v_pk_add_f32 {v(ACC+16+i,2)}, {v(ACC+16+i,2)}, {v(ACC+24+i,2)}")
    for i in range(0, 8, 2):
        A(f"v_pk_add_f32 {v(ACC+i,2)}, {v(ACC+i,2)}, {v(80+i,2)}")
    for i in range(0, 8, 2):
        A(f"v_pk_add_f32 {v(ACC+i,2)}, {v(ACC+i,2)}, {v(ACC+16+i,2)}")
    A(f"""
    s_lshr_b32 s47, s3, 2                  ; nt
    s_bfe_u32 s48, s3, 0x10001             ; mt
    s_and_b32 s50, s3, 1                   ; kh
    v_bfe_u32 v10, v1, 2, 2                ; r
    v_lshl_add_u32 v11, v3, 2, v10         ; 4h + r
    v_lshlrev_b32 v11, 7, v11
    v_bfe_u32 v12, v1, 4, 1
    v_lshl_add_u32 v11, v12, 5, v11
    v_and_b32 v12, 3, v1
    v_lshl_add_u32 v11, v12, 3, v11
    v_lshrrev_b32 v10, 1, v10
    v_xor_b32 v10, s47, v10
    v_lshl_add_u32 v11, v10, 6, v11
    s_lshl_b32 s53, s50, 15
    v_add_u32 v11, s53, v11
    s_mul_i32 s42, s48, {144*1024}
    s_add_u32 s42, s42, s43
    s_lshl_b32 s53, s50, 14
    s_add_u32 s42, s42, s53
    s_waitcnt vmcnt(0)
    s_barrier
    """)
    WA, OB, OD = 40, 104, 24
    for st in range(16):
        A(f"ds_read_b64_tr_b16 {v(WA+4*st,2)}, v11 offset:{st*2048}")
        A(f"ds_read_b64_tr_b16 {v(WA+4*st+2,2)}, v11 offset:{st*2048+1024}")
    A(f"""s_lshl_b32 s49, s37, 7
    s_add_u32 s49, s49, {FLG_O}""")
    A("s_waitcnt lgkmcnt(0)")
    poll(A, name, "s49", 8)
    A.stamp(6)
    V.reset()
    NB = 6
    def ob(st):
        A(f"s_add_u32 s46, s42, {(st//4)*4096}")
        V.op(f"buffer_load_dwordx4 {v(OB+4*(st%NB),4)}, v6, s[28:31], s46 offen offset:{(st%4)*1024}", ("O", st))
    for st in range(NB): ob(st)
    for st in range(16):
        V.wait([("O", st)])
        A(f"v_mfma_f32_32x32x16_bf16 {v(OD,16)}, {v(WA+4*st,4)}, {v(OB+4*(st%NB),4)}, {'0' if st == 0 else v(OD,16)}")
        if st + NB < 16: ob(st + NB)
    A(f"""
    s_lshl_b32 s41, s3, 11
    v_add_u32 v7, s41, v6
    s_xor_b32 s41, s41, 2048
    v_add_u32 v4, s41, v6
    s_nop 7
    s_nop 3
    s_cmp_eq_u32 s50, 0
    s_cbranch_scc1 {name}_nosw2
    """)
    for i in range(8): A(f"v_swap_b32 v{OD+i}, v{OD+8+i}")
    A.label(f"{name}_nosw2")
    A(f"""
    ds_write_b128 v7, {v(OD+8,4)}
    ds_write_b128 v7, {v(OD+12,4)} offset:1024
    """)
    for i in range(0, 8, 2): A(f"v_pk_add_f32 {v(ACC+i,2)}, {v(ACC+i,2)}, {v(OD+i,2)}")
    A(f"""
    s_waitcnt lgkmcnt(0)
    s_barrier
    ds_read_b128 {v(40,4)}, v4
    ds_read_b128 {v(44,4)}, v4 offset:1024
    s_waitcnt lgkmcnt(0)
    """)
    for i in range(0, 8, 2): A(f"v_pk_add_f32 {v(ACC+i,2)}, {v(ACC+i,2)}, {v(40+i,2)}")
    for i in range(4):
        A(f"v_cvt_pk_bf16_f32 v{96+i}, v{ACC+2*i}, v{ACC+2*i+1}")
    A(f"""s_nop 1
    v_permlane32_swap_b32 v96, v98
    v_permlane32_swap_b32 v97, v99
    v_lshl_add_u32 v15, v3, 4, v14
    buffer_store_dwordx4 v[96:99], v15, s[20:23], 0 offen
    """)
    A.stamp_flush(2, 12, 13, 3, 1, 8, t0=20)

def build(path, stamps=False, **kw):
    HEADER = open("parallel_sum__grouped_kv_mqa__glu_gated_geglu__prompt.s.ref").read().split("; Override launch")[0]
    t, d = gen_mega(stamps=stamps, **kw)
    out = HEADER + "; @launch grid=(512,1,1) block=(512,1,1) lds=81920\n" + '.amdgcn_target "amdgcn-amd-amdhsa--gfx950"\n.text\n' + t + '.section .rodata,"a"\n.p2align 6\n' + d
    open(path, "w").write(out)
if __name__ == "__main__":
    build("m12.s"); build("m12s.s", stamps=True)
```
